```python
import torch

def _softmax(x, axis=-1):
    return torch.softmax(x, dim=axis)
def _gelu(x):
    return torch.nn.functional.gelu(x, approximate="tanh")
def _silu(x):
    return torch.nn.functional.silu(x)
def _sigmoid(x):
    return torch.sigmoid(x)
def _layernorm(x, axis=-1, eps=1e-5):
    m = x.mean(dim=axis, keepdim=True)
    v = x.var(dim=axis, keepdim=True, unbiased=False)
    return (x - m) / torch.sqrt(v + eps)
def _scatter_add(tgt, idx, src, axis=0):
    return tgt.clone().index_add_(axis, idx, src)
def _segment_sum(src, seg, n):
    out = torch.zeros((n,) + src.shape[1:], dtype=src.dtype)
    return out.index_add_(0, seg, src)
def _pad(x, pw):
    flat = tuple(v for pair in reversed(pw) for v in pair)
    return torch.nn.functional.pad(x, flat)

kernel_name = 'interleave_layers__linear_attn_block__swiglu_ffn__prompt'

def setup_inputs():

    _w = (lambda a: (lambda t: t.to(torch.bfloat16) if t.is_floating_point() else t)(torch.as_tensor(a)))
    def _A_setup():
        B, S, D = 1, 2048, 640
        return {
            "x": _w((lambda *s: torch.randn(*s, dtype=torch.bfloat16) * 0.05)(B, S, D)),
            "wqkv": _w((lambda *s: torch.randn(*s, dtype=torch.bfloat16) * 0.05)(D, 3 * D)),
            "wo": _w((lambda *s: torch.randn(*s, dtype=torch.bfloat16) * 0.05)(D, D)),
        }
    _A_in = _A_setup()

    def _B_setup():
        B, S, D, F = 1, 2048, 640, 1728
        return {
            "x": _w((lambda *s: torch.randn(*s, dtype=torch.bfloat16) * 0.05)(B, S, D)),
            "w_gate": _w((lambda *s: torch.randn(*s, dtype=torch.bfloat16) * 0.05)(D, F)),
            "w_up": _w((lambda *s: torch.randn(*s, dtype=torch.bfloat16) * 0.05)(D, F)),
            "w_down": _w((lambda *s: torch.randn(*s, dtype=torch.bfloat16) * 0.05)(F, D)),
        }
    _B_in = _B_setup()

    return {
        "A_x": _A_in["x"],
        "A_wqkv": _A_in["wqkv"],
        "A_wo": _A_in["wo"],
        "B_x": _B_in["x"],
        "B_w_gate": _B_in["w_gate"],
        "B_w_up": _B_in["w_up"],
        "B_w_down": _B_in["w_down"],
    }

def reference(A_x, A_wqkv, A_wo, B_x, B_w_gate, B_w_up, B_w_down):
    def _A_ref(x, wqkv, wo):
        B, S, D = x.shape
        H = 32; Dh = D // H
        qkv = (lambda x, *d: x.permute(*d))((x @ wqkv).reshape(B, S, 3, H, Dh), 2, 0, 3, 1, 4)
        q, k, v = qkv[0], qkv[1], qkv[2]
        phi = lambda t: torch.where(t > 0, t + 1, torch.exp(t)) + 1e-6
        pq, pk = phi(q), phi(k)
        kv = torch.einsum("bhsd,bhse->bhde", pk, v)
        z = torch.einsum("bhsd->bhd", pk)
        num = torch.einsum("bhqd,bhde->bhqe", pq, kv)
        den = torch.einsum("bhqd,bhd->bhq", pq, z)[..., None] + 1e-6
        o = num / den
        return (lambda x, *d: x.permute(*d))(o, 0, 2, 1, 3).reshape(B, S, D) @ wo

    def _B_ref(x, w_gate, w_up, w_down):
        g = _silu(x @ w_gate)
        u = x @ w_up
        return (g * u) @ w_down

    x = A_x
    x = x + _A_ref(_layernorm(x, axis=-1), A_wqkv, A_wo)
    x = x + _B_ref(_layernorm(x, axis=-1), B_w_gate, B_w_up, B_w_down)
    x = x + _A_ref(_layernorm(x, axis=-1), A_wqkv, A_wo)
    x = x + _B_ref(_layernorm(x, axis=-1), B_w_gate, B_w_up, B_w_down)
    return x
```

```python
import re

TRANS = ("v_exp_f32", "v_log_f32", "v_rcp_f32", "v_rsq_f32", "v_sqrt_f32", "v_sin_f32", "v_cos_f32", "v_rcp_iflag_f32")

_reg_re = re.compile(r"^(-|\|)?(v|a|s)(\d+)\|?$")
_rng_re = re.compile(r"^(-)?(v|a|s)\[(\d+):(\d+)\]$")

def regs_of(op):
    op = op.strip()
    m = _rng_re.match(op)
    if m:
        return {(m.group(2), i) for i in range(int(m.group(3)), int(m.group(4)) + 1)}
    m = _reg_re.match(op)
    if m:
        return {(m.group(2), int(m.group(3)))}
    if op.startswith("abs(") and op.endswith(")"):
        return regs_of(op[4:-1])
    if op in ("vcc", "vcc_lo", "vcc_hi"):
        return {("vcc", 0)}
    if op in ("exec", "exec_lo", "exec_hi"):
        return {("exec", 0)}
    if op == "m0":
        return {("m0", 0)}
    return set()

def split_ops(rest):
    ops, cur, depth = [], "", 0
    for ch in rest:
        if ch in "[(":
            depth += 1
        elif ch in "])":
            depth -= 1
        if ch == "," and depth == 0:
            ops.append(cur.strip()); cur = ""
        else:
            cur += ch
    last = cur.strip()
    mods = ""
    if last:
        parts = last.split(None, 1)
        ops.append(parts[0])
        if len(parts) > 1:
            mods = parts[1]
    return ops, mods

class Ins:
    __slots__ = ("text", "mn", "ops", "mods", "kind", "dst", "src", "srcA", "srcB", "srcC", "passes",
                 "nop", "trans", "store_data", "is_lds_dma", "dpp", "sgpr_src_vmem", "cmt")
    def __init__(self, text):
        self.text = text
        t = text.split(";")[0].strip()
        parts = t.split(None, 1)
        self.mn = parts[0]
        rest = parts[1] if len(parts) > 1 else ""
        self.ops, self.mods = split_ops(rest) if rest else ([], "")
        self.kind = "other"
        self.dst = set(); self.src = set()
        self.srcA = self.srcB = self.srcC = set()
        self.passes = 0; self.nop = 0; self.trans = False
        self.store_data = set(); self.is_lds_dma = False; self.dpp = False
        self.sgpr_src_vmem = set()
        self.classify()

    def classify(self):
        mn, ops = self.mn, self.ops
        R = regs_of
        base = mn
        for suf in ("_e32", "_e64", "_dpp", "_sdwa"):
            if base.endswith(suf):
                base = base[: -len(suf)]
        if mn == "s_nop":
            self.kind = "nop"; self.nop = int(ops[0], 0) + 1
        elif mn.startswith("v_mfma") or mn.startswith("v_smfmac"):
            self.kind = "mfma"
            self.dst = R(ops[0]); self.srcA = R(ops[1]); self.srcB = R(ops[2]); self.srcC = R(ops[3])
            self.src = self.srcA | self.srcB | self.srcC
            if "32x32x16" in mn or "32x32x8" in mn:
                self.passes = 8
            elif "16x16x32" in mn or "16x16x16" in mn:
                self.passes = 4
            else:
                raise ValueError("unknown mfma passes " + mn)
        elif mn.startswith("v_"):
            self.kind = "valu"
            self.trans = base in TRANS
            self.dpp = mn.endswith("_dpp") or "row_" in self.mods or "quad_perm" in self.mods
            if base.startswith("v_cmp"):
                self.dst = R(ops[0])
                if base.startswith("v_cmpx"):
                    self.dst |= {("exec", 0)}
                for o in ops[1:]:
                    self.src |= R(o)
            elif base in ("v_add_co_u32", "v_sub_co_u32", "v_addc_co_u32", "v_subb_co_u32", "v_subrev_co_u32", "v_div_scale_f32", "v_mad_u64_u32"):
                self.dst = R(ops[0]) | R(ops[1])
                for o in ops[2:]:
                    self.src |= R(o)
            elif base in ("v_permlane16_swap_b32", "v_permlane32_swap_b32", "v_swap_b32"):
                self.dst = R(ops[0]) | R(ops[1]); self.src = set(self.dst)
            else:
                self.dst = R(ops[0])
                for o in ops[1:]:
                    self.src |= R(o)
                if base in ("v_fmac_f32", "v_dot2c_f32_bf16", "v_pk_fmac_f16", "v_mac_f32", "v_writelane_b32") or self.dpp:
                    self.src |= self.dst
                if base == "v_cndmask_b32" and len(ops) == 3:
                    self.src |= {("vcc", 0)}
        elif mn.startswith("buffer_") or mn.startswith("global_") or mn.startswith("flat_"):
            self.kind = "vmem"
            mods = self.mods.split()
            if mn in ("buffer_inv", "buffer_wbl2"):
                return
            if mn.startswith("buffer_"):
                lds = "lds" in mods
                self.is_lds_dma = lds
                if "load" in mn:
                    if lds:
                        addr_ops = ops
                    else:
                        self.dst = R(ops[0]); addr_ops = ops[1:]
                elif "store" in mn:
                    self.store_data = R(ops[0]); addr_ops = ops[1:]
                    self.src |= self.store_data
                else:
                    self.src |= R(ops[0]); addr_ops = ops[1:]
                    if "sc0" in mods:
                        self.dst = R(ops[0])
                for o in addr_ops:
                    self.src |= R(o)
            else:
                if "load" in mn:
                    lds = "lds" in mn
                    self.is_lds_dma = lds
                    if lds:
                        for o in ops: self.src |= R(o)
                    else:
                        self.dst = R(ops[0])
                        for o in ops[1:]: self.src |= R(o)
                elif "store" in mn:
                    self.store_data = R(ops[1])
                    for o in ops: self.src |= R(o)
                else:
                    if "sc0" in mods:
                        self.dst = R(ops[0])
                        for o in ops[1:]: self.src |= R(o)
                    else:
                        for o in ops: self.src |= R(o)
            if not ("x3" in mn or "x4" in mn):
                self.store_data = set()
        elif mn.startswith("ds_"):
            self.kind = "ds"
            if mn.startswith("ds_read") or mn.startswith("ds_bpermute") or mn.startswith("ds_permute") or mn.startswith("ds_swizzle"):
                self.dst = R(ops[0])
                for o in ops[1:]: self.src |= R(o)
            else:
                for o in ops: self.src |= R(o)
        elif mn.startswith("s_"):
            self.kind = "salu"
            if mn.startswith("s_cbranch") or mn in ("s_branch", "s_barrier", "s_endpgm", "s_waitcnt", "s_sleep", "s_setprio"):
                self.kind = "ctl"
            elif mn.startswith("s_cmp"):
                for o in ops: self.src |= R(o)
            elif mn.startswith("s_load") or mn.startswith("s_memtime") or mn.startswith("s_memrealtime") or mn.startswith("s_buffer_load"):
                self.kind = "smem"
                self.dst = R(ops[0])
                for o in ops[1:]: self.src |= R(o)
            else:
                if ops:
                    self.dst = R(ops[0])
                    for o in ops[1:]: self.src |= R(o)
                if "saveexec" in mn:
                    self.dst |= {("exec", 0)}
        else:
            raise ValueError("cannot classify: " + self.text)

def is_v(r):
    return r[0] in ("v", "a")
def is_s(r):
    return r[0] in ("s", "vcc")

def need_states(p, c):
    n = 0
    pv = {r for r in p.dst if is_v(r)}
    ps = {r for r in p.dst if is_s(r)}
    if p.kind == "valu" and p.mn.startswith("v_dot"):
        if c.kind in ("valu", "mfma", "vmem", "ds") and pv & (c.src | c.dst):
            same = (c.mn == p.mn)
            if same:
                ab = regs_of(c.ops[1]) | regs_of(c.ops[2])
                if pv & ab:
                    n = max(n, 3)
            else:
                n = max(n, 3)
    if p.kind == "valu":
        if c.kind == "mfma" and pv & c.src:
            n = max(n, 2)
        if c.kind == "valu":
            b = c.mn
            if p.trans and not c.trans and pv & c.src:
                n = max(n, 1)
            if (b.startswith("v_readfirstlane") or b.startswith("v_readlane")) and pv & c.src:
                n = max(n, 1)
            if b.startswith("v_permlane") and pv & c.src:
                n = max(n, 2)
            if c.dpp and pv & c.src:
                n = max(n, 2)
            if ps & c.src:
                n = max(n, 2)
                if b.startswith("v_readlane") or b.startswith("v_writelane"):
                    n = max(n, 4)
            if ("exec", 0) in p.dst:
                n = max(n, 5 if c.dpp else (4 if ("readlane" in b or "readfirstlane" in b or "permlane" in b) else 0))
        if c.kind == "vmem" and ps & c.src:
            n = max(n, 5)
        if c.kind == "mfma" and ("exec", 0) in p.dst:
            n = max(n, 4)
    if p.kind == "mfma":
        P = p.passes
        full = {2: 5, 4: 8, 8: 12, 16: 20}[P]
        part = {2: 4, 4: 6, 8: 10, 16: 18}[P]
        war = {2: 1, 4: 3, 8: 7, 16: 15}[P]
        if c.kind == "mfma":
            if p.dst & (c.srcA | c.srcB):
                n = max(n, full)
            if p.dst & c.srcC:
                if not (p.dst == c.srcC and p.passes == c.passes):
                    n = max(n, part)
            if p.dst & c.dst and p.dst != c.dst:
                n = max(n, part)
        elif c.kind in ("valu", "vmem", "ds"):
            if p.dst & (c.src | c.dst):
                n = max(n, full)
            if c.kind == "valu" and p.srcC & c.dst:
                n = max(n, war)
    if p.kind == "vmem" and p.store_data:
        if c.kind == "valu" and p.store_data & c.dst:
            n = max(n, 2)
        elif c.kind in ("ds", "vmem") and p.store_data & c.dst:
            n = max(n, 1)
    if p.kind == "salu" and ("m0", 0) in p.dst:
        if c.kind == "vmem" and c.is_lds_dma:
            n = max(n, 1)
    return n

MAXWIN = 21

class Kern:
    def __init__(self, name):
        self.name = name
        self.items = []
    def e(self, text):
        for ln in text.split("\n"):
            ln = ln.strip()
            if not ln:
                continue
            if ln.startswith(";"):
                self.items.append(("c", ln))
            elif ln.endswith(":") and " " not in ln:
                self.items.append(("l", ln[:-1]))
            else:
                self.items.append(("i", ln))
    def c(self, text):
        self.items.append(("c", "; " + text))
    def label(self, l):
        self.items.append(("l", l))

    def finalize(self):
        out = []
        def states_between(seq, i_prod, end):
            n = 0
            for k in range(i_prod + 1, end):
                t, x = seq[k]
                if t == "i":
                    n += x.nop if x.kind == "nop" else 1
            return n
        def required(seq, c):
            need = 0
            dist = 0
            k = len(seq) - 1
            while k >= 0 and dist < MAXWIN:
                t, x = seq[k]
                if t == "i":
                    r = need_states(x, c)
                    if r > dist:
                        need = max(need, r - dist)
                    dist += x.nop if x.kind == "nop" else 1
                k -= 1
            return need
        def emit_nops(seq, n):
            while n > 0:
                m = min(n, 16)
                seq.append(("i", Ins(f"s_nop {m-1}")))
                n -= m
        labels = {}
        for t, x in self.items:
            if t == "i":
                ins = Ins(x)
                n = required(out, ins)
                emit_nops(out, n)
                if ins.mn.startswith("s_cbranch") or ins.mn == "s_branch":
                    tgt = ins.ops[0]
                    if tgt in labels:
                        head = [y for y in out[labels[tgt]:] if y[0] == "i"][:MAXWIN]
                        extra = 0
                        sim = list(out) + [("i", ins)]
                        for hi, (_, h) in enumerate(head):
                            sim2 = sim + head[:hi]
                            extra = max(extra, required(sim2, h))
                        emit_nops(out, extra)
                out.append(("i", ins))
            elif t == "l":
                labels[x] = len(out)
                out.append(("l", x))
            else:
                out.append(("c", x))
        lines = []
        idx_of_label = {x: i for i, (t, x) in enumerate(out) if t == "l"}
        for i, (t, x) in enumerate(out):
            if t == "i" and (x.mn.startswith("s_cbranch") or x.mn == "s_branch"):
                tgt = x.ops[0]
                if tgt in idx_of_label and idx_of_label[tgt] > i:
                    head = [y for y in out[idx_of_label[tgt]:] if y[0] == "i"][:MAXWIN]
                    sim = out[max(0, i - 3 * MAXWIN): i + 1]
                    for hi, (_, h) in enumerate(head):
                        r = required(sim + head[:hi], h)
                        if r > 0:
                            raise RuntimeError(f"hazard across forward branch to {tgt}: {h.text} needs {r} more states")
        for t, x in out:
            if t == "i":
                lines.append("  " + x.text)
            elif t == "l":
                lines.append(x + ":")
            else:
                lines.append("  " + x)
        return "\n".join(lines) + "\n"

def kernel_text(k, vgpr, agpr=0, sgpr=102):
    name = k.name
    t = f".globl {name}\n.p2align 8\n.type {name},@function\n{name}:\n" + k.finalize()
    acc = (vgpr + 3) // 4 * 4
    nfv = acc + agpr if agpr else vgpr
    r = f""".amdhsa_kernel {name}
  .amdhsa_next_free_vgpr {nfv}
  .amdhsa_next_free_sgpr {sgpr}
  .amdhsa_accum_offset {acc}
  .amdhsa_group_segment_fixed_size 0
  .amdhsa_kernarg_size 80
  .amdhsa_user_sgpr_count 2
  .amdhsa_user_sgpr_kernarg_segment_ptr 1
  .amdhsa_system_sgpr_workgroup_id_x 1
.end_amdhsa_kernel
"""
    return t, r
```

```python
from asmlib import Kern, kernel_text

S, D, H, DH, F = 2048, 640, 32, 20, 1728
KB = 1024

def _al(x, a=4096):
    return (x + a - 1) // a * a
WS = {}
_off = 0
def _alloc(name, size):
    global _off
    WS[name] = (_off, size)
    _off = _al(_off + size)
_alloc("WQ", 16 * 20 * 8 * KB)
_alloc("WO", 8 * 20 * 5 * KB)
_alloc("WGU", 16 * 20 * 14 * KB)
_alloc("WD", 8 * 56 * 5 * KB)
_alloc("CSQ", 1920 * 4)
_alloc("CSG", 1728 * 4)
_alloc("CSU", 1728 * 4)
for i in range(4):
    _alloc(f"X{i}", 128 * 20 * KB)
for i in range(4):
    _alloc(f"ST{i}", 128 * KB)
for i in range(2):
    _alloc(f"PQ{i}", 128 * 16 * 1536)
_alloc("KV", 2 * 32 * 420 * 4)
for i in range(2):
    _alloc(f"H{i}", 128 * 56 * KB)
WS_END = _off
KVL = 32 * 420 * 4

ARG = dict(x=0, wqkv=8, wo=16, bx=24, wg=32, wu=40, wd=48, out=56, dbg=64, ws=72)
OOB = 0x40000000

class K(Kern):
    def __init__(self, name):
        super().__init__(name)
        self.vmq = []
    def vm(self, text, tag=None):
        self.e(text)
        self.vmq.append(tag)
    def vm_after(self, tag):
        idx = max(i for i, t in enumerate(self.vmq) if t == tag)
        return len(self.vmq) - 1 - idx
    def wait_vm(self, tag, extra=""):
        n = self.vm_after(tag)
        assert n <= 63 or True
        n = min(n, 63)
        self.e(f"s_waitcnt vmcnt({n}) {extra}".strip())
    def srd(self, d, blo, size, off=0):
        if off:
            self.e(f"s_add_u32 s{d}, s{blo}, 0x{off:x}")
            self.e(f"s_addc_u32 s{d+1}, s{blo+1}, 0")
        else:
            self.e(f"s_mov_b32 s{d}, s{blo}")
            self.e(f"s_mov_b32 s{d+1}, s{blo+1}")
        self.e(f"s_mov_b32 s{d+2}, 0x{size:x}")
        self.e(f"s_mov_b32 s{d+3}, 0x00020000")
    def sel(self, d, a, b):
        self.e(f"s_mov_b32 s{d}, {b}")
        self.e(f"s_cselect_b32 s{d}, {a}, s{d}")
    def ldarg(self, d, name):
        self.e(f"s_load_dwordx2 s[{d}:{d+1}], s[0:1], {ARG[name]}")

def vr(b, n=1, p="v"):
    return f"{p}{b}" if n == 1 else f"{p}[{b}:{b+n-1}]"
def ar(b, n=1):
    return vr(b, n, "a")
def sr(b, n=1):
    return vr(b, n, "s")
```

```python
from common import *

N_J1, N_J2, N_J3, N_J4, N_J5, N_J6, N_J7 = 80, 160, 40, 112, 32, 43, 7
B_J2 = N_J1
B_J3 = B_J2 + N_J2
B_J4 = B_J3 + N_J3
B_J5 = B_J4 + N_J4
B_J6 = B_J5 + N_J5
B_J7 = B_J6 + N_J6
K0_GRID = B_J7 + N_J7

def frag_body(k, ntiles, dst_imm):
    L = 16
    for t in range(ntiles):
        if t == 7:
            k.e("s_waitcnt vmcnt(48)")
        for j in range(8):
            k.vm(f"buffer_load_ushort v{L+8*t+j}, v{6+t}, s[8:11], s{16+j} offen", f"t{t}")
    P = L + 64
    for t in range(ntiles):
        k.wait_vm(f"t{t}")
        for p in range(4):
            k.e(f"v_lshl_or_b32 v{P+4*t+p}, v{L+8*t+2*p+1}, 16, v{L+8*t+2*p}")
        off = dst_imm(t)
        hi, lo = off // 4096 * 4096, off % 4096
        if hi:
            k.e(f"s_add_u32 s25, s24, {hi}")
            so = "s25"
        else:
            so = "s24"
        k.vm(f"buffer_store_dwordx4 v[{P+4*t}:{P+4*t+3}], v5, s[12:15], {so} offen offset:{lo}", "st")

def row_soffs(k, stride):
    k.e(f"s_mul_i32 s16, s26, {stride}")
    k.e(f"s_add_u32 s28, s26, s27")
    k.e(f"s_mul_i32 s20, s28, {stride}")
    for j in range(1, 4):
        k.e(f"s_add_u32 s{16+j}, s16, {j*stride}")
        k.e(f"s_add_u32 s{20+j}, s20, {j*stride}")

def build_k0():
    k = K("k0_kernel")
    k.e(f"s_cmp_ge_u32 s2, {K0_GRID}")
    k.e("s_cbranch_scc1 K0_END")
    k.ldarg(4, "ws")
    k.e("v_lshrrev_b32 v1, 6, v0")
    k.e("v_and_b32 v2, 63, v0")
    k.e("v_readfirstlane_b32 s3, v1")
    k.e("v_lshrrev_b32 v3, 4, v2")
    k.e("v_and_b32 v4, 15, v2")
    k.e("v_lshlrev_b32 v5, 4, v2")
    k.e(f"s_cmp_ge_u32 s2, {B_J7}\ns_cbranch_scc1 K0_J7")
    k.e(f"s_cmp_ge_u32 s2, {B_J6}\ns_cbranch_scc1 K0_J6")
    k.e(f"s_cmp_ge_u32 s2, {B_J5}\ns_cbranch_scc1 K0_J5")
    k.e(f"s_cmp_ge_u32 s2, {B_J3}\ns_cbranch_scc1 K0_J34")
    k.e(f"s_cmp_ge_u32 s2, {B_J2}\ns_cbranch_scc1 K0_J2")

    k.vmq = []
    k.ldarg(6, "wqkv")
    k.e("s_lshr_b32 s29, s2, 2")
    k.e("s_and_b32 s30, s2, 3")
    k.e("s_lshl_b32 s30, s30, 2\ns_add_u32 s30, s30, s3")
    k.e("s_lshl_b32 s26, s29, 5\ns_mov_b32 s27, 16")
    row_soffs(k, 3840)
    k.e("s_mul_i32 s31, s30, 80")
    k.e("v_mul_u32_u24 v14, 15360, v3")
    k.e("v_lshl_add_u32 v14, v4, 1, v14")
    k.e("v_add_u32 v14, s31, v14")
    kb, vb, qb = 640 * 2, 1280 * 2, 0
    k.e(f"v_add_u32 v6, {kb}, v14")
    k.e(f"v_add_u32 v7, {kb+32}, v14")
    k.e(f"v_add_u32 v8, {kb+64}, v14")
    k.e(f"v_add_u32 v15, {vb-16}, v14")
    k.e(f"v_cmp_gt_u32 vcc, 8, v4")
    k.e(f"v_cndmask_b32 v8, v15, v8, vcc")
    k.e(f"v_add_u32 v9, {vb+16}, v14")
    k.e(f"v_add_u32 v10, {vb+48}, v14")
    k.e(f"v_mov_b32 v11, v14")
    k.e(f"v_add_u32 v12, 32, v14")
    k.e(f"v_add_u32 v13, 64, v14")
    k.e(f"v_mov_b32 v15, 0x{OOB:x}")
    k.e(f"v_cndmask_b32 v13, v15, v13, vcc")
    k.e("s_mul_i32 s24, s30, 20\ns_add_u32 s24, s24, s29\ns_lshl_b32 s24, s24, 13")
    k.e("s_waitcnt lgkmcnt(0)")
    k.srd(8, 6, 640 * 1920 * 2)
    k.srd(12, 4, WS["WQ"][1], WS["WQ"][0])
    frag_body(k, 8, lambda t: t * 1024)
    k.e("s_branch K0_END")

    k.label("K0_J2")
    k.vmq = []
    k.e(f"s_sub_u32 s29, s2, {B_J2}")
    k.e("s_and_b32 s31, s29, 1")
    k.e("s_lshl_b32 s28, s31, 3")
    k.e("s_add_u32 s6, s0, s28\ns_addc_u32 s7, s1, 0")
    k.e(f"s_load_dwordx2 s[6:7], s[6:7], {ARG['wg']}")
    k.e("s_lshr_b32 s30, s29, 1\ns_and_b32 s30, s30, 3")
    k.e("s_lshl_b32 s30, s30, 2\ns_add_u32 s30, s30, s3")
    k.e("s_lshr_b32 s29, s29, 3")
    k.e("s_lshl_b32 s26, s29, 5\ns_mov_b32 s27, 16")
    row_soffs(k, 3456)
    k.e("s_mul_i32 s32, s30, 216")
    k.e("v_mul_u32_u24 v14, 13824, v3")
    k.e("v_lshl_add_u32 v14, v4, 1, v14")
    k.e("v_add_u32 v6, s32, v14")
    for t in range(1, 7):
        k.e(f"v_add_u32 v{6+t}, {32*t}, v6")
    k.e(f"v_mov_b32 v15, 0x{OOB:x}")
    k.e("v_cmp_gt_u32 vcc, 12, v4")
    k.e("v_cndmask_b32 v12, v15, v12, vcc")
    k.e("s_mul_i32 s24, s30, 20\ns_add_u32 s24, s24, s29\ns_mul_i32 s24, s24, 14")
    k.e("s_mul_i32 s31, s31, 7\ns_add_u32 s24, s24, s31\ns_lshl_b32 s24, s24, 10")
    k.e("s_waitcnt lgkmcnt(0)")
    k.srd(8, 6, 640 * 1728 * 2)
    k.srd(12, 4, WS["WGU"][1], WS["WGU"][0])
    frag_body(k, 7, lambda t: t * 1024)
    k.e("s_branch K0_END")

    k.label("K0_J34")
    k.vmq = []
    k.e(f"s_cmp_ge_u32 s2, {B_J4}\ns_cbranch_scc1 K0_J4")
    k.ldarg(6, "wo")
    k.e(f"s_sub_u32 s29, s2, {B_J3}")
    k.e("s_and_b32 s30, s29, 1\ns_lshl_b32 s30, s30, 2\ns_add_u32 s30, s30, s3")
    k.e("s_lshr_b32 s29, s29, 1")
    k.e("s_mul_i32 s31, s29, 52\ns_lshr_b32 s31, s31, 8")
    k.e("s_mul_i32 s32, s31, 5\ns_sub_u32 s32, s29, s32")
    k.e("s_mul_i32 s33, s31, 160")
    k.e("s_cmp_gt_u32 s32, 2\ns_cselect_b32 s34, 1, 0\ns_sub_u32 s34, s32, s34\ns_mul_i32 s34, s34, 40\ns_add_u32 s26, s33, s34")
    k.e("s_add_u32 s35, s33, 16")
    k.e("s_cmp_eq_u32 s32, 2")
    k.e("s_cselect_b32 s26, s35, s26\ns_cselect_b32 s27, 80, 20\ns_cselect_b32 s36, 20, 4")
    k.e("s_mov_b32 s37, 4")
    k.e("s_mul_i32 s24, s30, 20\ns_add_u32 s24, s24, s29\ns_mul_i32 s24, s24, 5120")
    k.e("s_waitcnt lgkmcnt(0)")
    k.srd(8, 6, 640 * 640 * 2)
    k.srd(12, 4, WS["WO"][1], WS["WO"][0])
    k.e("s_branch K0_J34C")
    k.label("K0_J4")
    k.ldarg(6, "wd")
    k.e(f"s_sub_u32 s29, s2, {B_J4}")
    k.e("s_and_b32 s30, s29, 1\ns_lshl_b32 s30, s30, 2\ns_add_u32 s30, s30, s3")
    k.e("s_lshr_b32 s29, s29, 1")
    k.e("s_mul_i32 s31, s29, 37\ns_lshr_b32 s31, s31, 8")
    k.e("s_mul_i32 s32, s31, 7\ns_sub_u32 s32, s29, s32")
    k.e("s_mul_i32 s33, s31, 216")
    k.e("s_cmp_ge_u32 s32, 3\ns_cselect_b32 s34, 12, 0\ns_lshl_b32 s35, s32, 5\ns_add_u32 s26, s33, s35\ns_add_u32 s26, s26, s34")
    k.e("s_add_u32 s35, s33, 96")
    k.e("s_cmp_eq_u32 s32, 6")
    k.e("s_cselect_b32 s26, s35, s26\ns_cselect_b32 s27, 108, 16\ns_cselect_b32 s37, 3, 4")
    k.e("s_mov_b32 s36, 4")
    k.e("s_mul_i32 s24, s30, 56\ns_add_u32 s24, s24, s29\ns_mul_i32 s24, s24, 5120")
    k.e("s_waitcnt lgkmcnt(0)")
    k.srd(8, 6, 1728 * 640 * 2)
    k.srd(12, 4, WS["WD"][1], WS["WD"][0])
    k.label("K0_J34C")
    row_soffs(k, 1280)
    k.e("s_mul_i32 s36, s36, 1280")
    k.e("v_mul_lo_u32 v14, v3, s36")
    k.e("v_lshl_add_u32 v14, v4, 1, v14")
    k.e("s_mul_i32 s38, s30, 160")
    k.e("v_add_u32 v14, s38, v14")
    k.e(f"v_mov_b32 v15, 0x{OOB:x}")
    k.e("v_cmp_gt_u32 vcc, s37, v3")
    k.e("v_cndmask_b32 v14, v15, v14, vcc")
    k.e("s_and_b32 s39, s30, 1\ns_cmp_eq_u32 s39, 1")
    for t in range(5):
        k.sel(39, 32*((t+1)%5), 32*t)
        k.e(f"v_add_u32 v{6+t}, s39, v14")
    frag_body(k, 5, lambda t: t * 1024)
    k.e("s_branch K0_END")

    k.label("K0_J5")
    k.vmq = []
    k.ldarg(6, "x")
    k.e(f"s_sub_u32 s29, s2, {B_J5}\ns_lshl_b32 s29, s29, 2\ns_add_u32 s29, s29, s3")
    k.e("s_mul_i32 s30, s29, 20480")
    k.e("v_mul_u32_u24 v6, 1280, v4")
    k.e("v_lshl_add_u32 v6, v3, 3, v6")
    k.e("v_lshlrev_b32 v7, 3, v2")
    k.e("s_waitcnt lgkmcnt(0)")
    k.srd(8, 6, S * D * 2)
    k.srd(12, 4, WS["X0"][1], WS["X0"][0])
    k.srd(40, 4, WS["ST0"][1], WS["ST0"][0])
    L = 16
    for nt in range(40):
        k.vm(f"buffer_load_dwordx2 v[{L+2*nt}:{L+2*nt+1}], v6, s[8:11], s30 offen offset:{32*nt}", f"n{nt}")
    k.e("v_mov_b32 v8, 0\nv_mov_b32 v9, 0\nv_mov_b32 v10, 0\nv_mov_b32 v11, 0")
    k.e("s_mov_b32 s33, 0x3f803f80")
    for ks in range(20):
        k.wait_vm(f"n{2*ks+1}")
        b = L + 4 * ks
        for q in range(4):
            k.e(f"v_dot2_f32_bf16 v{8+(q&1)}, v{b+q}, s33, v{8+(q&1)}")
            k.e(f"v_dot2_f32_bf16 v{10+(q&1)}, v{b+q}, v{b+q}, v{10+(q&1)}")
        if ks % 4 == 0:
            k.e(f"s_add_u32 s31, s30, {ks*1024}")
        lo = (ks % 4) * 1024
        if ks % 5 != 2:
            k.vm(f"buffer_store_dwordx4 v[{b}:{b+3}], v5, s[12:15], s31 offen offset:{lo}", "st")
        else:
            k.vm(f"buffer_store_dwordx2 v[{b}:{b+1}], v7, s[12:15], s31 offen offset:{lo}", "st")
            k.vm(f"buffer_store_dwordx2 v[{b+2}:{b+3}], v7, s[12:15], s31 offen offset:{lo+512}", "st")
    k.e("v_add_f32 v8, v8, v9\nv_add_f32 v10, v10, v11")
    for sw in ("v_permlane16_swap_b32", "v_permlane32_swap_b32"):
        k.e("v_mov_b32 v9, v8\nv_mov_b32 v11, v10")
        k.e(f"{sw} v8, v9\n{sw} v10, v11")
        k.e("v_add_f32 v8, v8, v9\nv_add_f32 v10, v10, v11")
    k.e("v_cmp_eq_u32 vcc, 0, v3")
    k.e("v_mov_b32 v14, 0\nv_mov_b32 v15, 0")
    k.e("v_cndmask_b32 v12, v14, v8, vcc\nv_cndmask_b32 v13, v14, v10, vcc")
    k.e("v_lshlrev_b32 v9, 8, v3\nv_lshl_add_u32 v9, v4, 3, v9")
    k.e("s_lshl_b32 s31, s29, 10")
    k.vm("buffer_store_dwordx2 v[12:13], v9, s[40:43], s31 offen", "st")
    k.vm("buffer_store_dwordx2 v[14:15], v9, s[40:43], s31 offen offset:128", "st")
    k.e("s_branch K0_END")

    k.label("K0_J6")
    k.vmq = []
    k.e(f"s_sub_u32 s29, s2, {B_J6}")
    k.e("s_cmp_ge_u32 s29, 15\ns_cbranch_scc1 K0_J6B")
    k.ldarg(6, "wqkv")
    k.e("s_mov_b32 s30, 3840")
    k.e("s_waitcnt lgkmcnt(0)")
    k.srd(8, 6, 640 * 1920 * 2)
    k.srd(12, 4, WS["CSQ"][1], WS["CSQ"][0])
    k.e("s_branch K0_J6C")
    k.label("K0_J6B")
    k.e("s_cmp_ge_u32 s29, 29\ns_cbranch_scc1 K0_J6U")
    k.ldarg(6, "wg")
    k.e("s_sub_u32 s29, s29, 15")
    k.e("s_waitcnt lgkmcnt(0)")
    k.srd(12, 4, WS["CSG"][1], WS["CSG"][0])
    k.e("s_branch K0_J6D")
    k.label("K0_J6U")
    k.ldarg(6, "wu")
    k.e("s_sub_u32 s29, s29, 29")
    k.e("s_waitcnt lgkmcnt(0)")
    k.srd(12, 4, WS["CSU"][1], WS["CSU"][0])
    k.label("K0_J6D")
    k.e("s_mov_b32 s30, 3456")
    k.srd(8, 6, 640 * 1728 * 2)
    k.label("K0_J6C")
    k.e("v_mul_lo_u32 v6, v3, s30")
    k.e("v_lshl_add_u32 v6, v4, 4, v6")
    k.e("s_lshl_b32 s31, s29, 8")
    k.e("v_add_u32 v6, s31, v6")
    k.e("s_mul_i32 s32, s3, 160\ns_mul_i32 s32, s32, s30")
    k.e("s_lshl_b32 s33, s30, 2")
    L = 24
    for it in range(40):
        k.vm(f"buffer_load_dwordx4 v[{L+4*it}:{L+4*it+3}], v6, s[8:11], s32 offen", f"r{it}")
        k.e("s_add_u32 s32, s32, s33")
    for q in range(8):
        k.e(f"v_mov_b32 v{8+q}, 0")
    k.e("s_mov_b32 s34, 0x00003f80\ns_mov_b32 s35, 0x3f800000")
    for it in range(40):
        k.wait_vm(f"r{it}")
        for q in range(4):
            k.e(f"v_dot2_f32_bf16 v{8+2*q}, v{L+4*it+q}, s34, v{8+2*q}")
            k.e(f"v_dot2_f32_bf16 v{9+2*q}, v{L+4*it+q}, s35, v{9+2*q}")
    for sw in ("v_permlane16_swap_b32", "v_permlane32_swap_b32"):
        for q in range(8):
            k.e(f"v_mov_b32 v{16+q}, v{8+q}")
        for q in range(8):
            k.e(f"{sw} v{8+q}, v{16+q}")
        for q in range(8):
            k.e(f"v_add_f32 v{8+q}, v{8+q}, v{16+q}")
    k.e("s_lshl_b32 s36, s3, 9")
    k.e("v_lshlrev_b32 v16, 5, v4\nv_add_u32 v16, s36, v16")
    k.e("ds_write_b128 v16, v[8:11]\nds_write_b128 v16, v[12:15] offset:16")
    k.e("s_waitcnt lgkmcnt(0)\ns_barrier")
    k.e("v_lshlrev_b32 v17, 2, v0")
    k.e("v_and_b32 v17, 0x1fc, v17")
    k.e("ds_read_b32 v18, v17\nds_read_b32 v19, v17 offset:512\nds_read_b32 v20, v17 offset:1024\nds_read_b32 v21, v17 offset:1536")
    k.e("s_waitcnt lgkmcnt(0)")
    k.e("v_add_f32 v18, v18, v19\nv_add_f32 v20, v20, v21\nv_add_f32 v18, v18, v20")
    k.e("s_lshl_b32 s31, s29, 9")
    k.vm("buffer_store_dword v18, v17, s[12:15], s31 offen", "st")
    k.e("s_branch K0_END")

    k.label("K0_J7")
    k.e(f"s_sub_u32 s29, s2, {B_J7}\ns_lshl_b32 s29, s29, 2\ns_add_u32 s29, s29, s3\ns_lshl_b32 s29, s29, 12")
    k.e("s_waitcnt lgkmcnt(0)")
    k.srd(12, 4, WS["KV"][1], WS["KV"][0])
    k.e("v_mov_b32 v8, 0\nv_mov_b32 v9, 0\nv_mov_b32 v10, 0\nv_mov_b32 v11, 0")
    for q in range(4):
        k.e(f"buffer_store_dwordx4 v[8:11], v5, s[12:15], s29 offen offset:{q*1024}")
    k.label("K0_END")
    k.e("s_endpgm")
    return k, 192, 0, K0_GRID, 2048
```

```python
from common import *

LOG2E = 0x3fb8aa3b
EPS6 = 0x358637bd
EPS5 = 0x3727c5ac
INV640 = 0x3acccccd

def wg_decode(k, tall):
    k.e("s_and_b32 s6, s2, 7\ns_lshr_b32 s7, s2, 3")
    k.e("s_lshr_b32 s8, s6, 1\ns_and_b32 s6, s6, 1")
    if tall:
        k.e("s_lshl_b32 s4, s8, 2\ns_lshr_b32 s9, s7, 3\ns_add_u32 s4, s4, s9")
        k.e("s_lshl_b32 s5, s6, 3\ns_and_b32 s9, s7, 7\ns_add_u32 s5, s5, s9")
    else:
        k.e("s_lshl_b32 s4, s8, 3\ns_lshr_b32 s9, s7, 2\ns_add_u32 s4, s4, s9")
        k.e("s_lshl_b32 s5, s6, 2\ns_and_b32 s9, s7, 3\ns_add_u32 s5, s5, s9")
    k.e("v_lshrrev_b32 v1, 6, v0")
    k.e("v_and_b32 v2, 63, v0")
    k.e("v_readfirstlane_b32 s3, v1")
    k.e("v_lshrrev_b32 v3, 4, v2")
    k.e("v_and_b32 v4, 15, v2")
    k.e("v_lshlrev_b32 v5, 4, v2")
    k.e("v_lshlrev_b32 v6, 3, v2")

def stats_to_ab(k, st, a, b, t0):
    k.e(f"v_add_f32 v{st}, v{st}, v{st+2}")
    k.e(f"v_add_f32 v{st+1}, v{st+1}, v{st+3}")
    for sw in ("v_permlane16_swap_b32", "v_permlane32_swap_b32"):
        k.e(f"v_mov_b32 v{st+2}, v{st}\nv_mov_b32 v{st+3}, v{st+1}")
        k.e(f"{sw} v{st}, v{st+2}\n{sw} v{st+1}, v{st+3}")
        k.e(f"v_add_f32 v{st}, v{st}, v{st+2}\nv_add_f32 v{st+1}, v{st+1}, v{st+3}")
    k.e(f"v_mul_f32 v{st}, 0x{INV640:x}, v{st}")
    k.e(f"v_mul_f32 v{st+1}, 0x{INV640:x}, v{st+1}")
    k.e(f"v_fma_f32 v{st+1}, -v{st}, v{st}, v{st+1}")
    k.e(f"v_max_f32 v{st+1}, 0, v{st+1}")
    k.e(f"v_add_f32 v{st+1}, 0x{EPS5:x}, v{st+1}")
    k.e(f"v_rsq_f32 v{a}, v{st+1}")
    k.e(f"v_mul_f32 v{b}, v{st}, v{a}")
    k.e(f"v_sub_f32 v{b}, 0, v{b}")

def stats_load(k, st, nm, srd, soff, vtmp, tag, sc=""):
    k.e(f"v_lshlrev_b32 v{vtmp}, 8, v3\nv_lshl_add_u32 v{vtmp}, v4, 3, v{vtmp}")
    for m in range(nm):
        k.vm(f"buffer_load_dwordx2 v[{st+4*m}:{st+4*m+1}], v{vtmp}, s[{srd}:{srd+3}], s{soff} offen offset:{1024*m}{sc}", tag)
        k.vm(f"buffer_load_dwordx2 v[{st+4*m+2}:{st+4*m+3}], v{vtmp}, s[{srd}:{srd+3}], s{soff} offen offset:{1024*m+128}{sc}", tag)

def phi_ops(k, x, t, s_log2e, s_eps):
    k.e(f"v_mul_f32 v{t}, s{s_log2e}, v{x}")
    k.e(f"v_min_f32 v{t}, 0, v{t}")
    k.e(f"v_exp_f32 v{t}, v{t}")
    k.e(f"v_max_f32 v{x}, 0, v{x}")
    k.e(f"v_add_f32 v{x}, s{s_eps}, v{x}")
    k.e(f"v_add_f32 v{x}, v{x}, v{t}")

def xload(k, dst, dstp, ks, sbase, srd, tag, sc=""):
    so = sbase(ks // 4); lo = (ks % 4) * 1024
    if ks % 5 != 2:
        k.vm(f"buffer_load_dwordx4 {vr(dst,4,dstp)}, v5, s[{srd}:{srd+3}], s{so} offen offset:{lo}{sc}", tag)
    else:
        k.vm(f"buffer_load_dwordx2 {vr(dst,2,dstp)}, v6, s[{srd}:{srd+3}], s{so} offen offset:{lo}{sc}", tag)
        k.vm(f"buffer_load_dwordx2 {vr(dst+2,2,dstp)}, v6, s[{srd}:{srd+3}], s{so} offen offset:{lo+512}{sc}", tag)

def build_p1(layer, PD=3):
    name = f"p1l{layer}_kernel"
    k = K(name)
    XIN = f"X{2*layer}"; STIN = f"ST{2*layer}"; PQ = f"PQ{layer}"
    k.e("s_cmp_ge_u32 s2, 256")
    k.e(f"s_cbranch_scc1 {name}_END")
    k.ldarg(10, "ws")
    wg_decode(k, True)
    k.e("s_lshl_b32 s6, s4, 3\ns_lshl_b32 s7, s3, 1\ns_add_u32 s6, s6, s7")
    k.e("s_mul_i32 s7, s6, 20480")
    for m in range(2):
        for q in range(5):
            k.e(f"s_add_u32 s{40+5*m+q}, s7, {m*20480+q*4096}")
    k.e("s_mul_i32 s8, s5, 163840")
    k.e("s_lshl_b32 s50, s3, 11")
    k.e("s_waitcnt lgkmcnt(0)")
    k.e(f"s_add_u32 s12, s10, 0x{WS['WQ'][0]:x}\ns_addc_u32 s13, s11, 0")
    k.e(f"s_add_u32 s12, s12, s8\ns_addc_u32 s13, s13, 0")
    k.e("s_mov_b32 s14, 163840\ns_mov_b32 s15, 0x20000")
    k.srd(16, 10, WS[XIN][1], WS[XIN][0])
    k.srd(20, 10, WS[STIN][1], WS[STIN][0])
    k.srd(24, 10, WS["CSQ"][1], WS["CSQ"][0])
    k.srd(28, 10, WS[PQ][1], WS[PQ][0])
    k.srd(32, 10, KVL, WS["KV"][0] + layer * KVL)

    ACC = 128
    def acc(m, t): return ACC + (m * 8 + t) * 4
    def bbuf(ks, t): return 64 + (ks & 1) * 32 + t * 4
    def xa(ks, m): return (2 * ks + m) * 4
    k.e("v_add_u32 v7, 0x10000, v5\nv_add_u32 v8, 0x20000, v5")
    def lds_b(ks, t):
        off = ks * 8192 + t * 1024
        return (5, 7, 8)[off >> 16], off & 0xffff

    def issue_chunk_loads(c):
        L = []
        for ks in (2 * c, 2 * c + 1):
            def fb(ks=ks):
                k.e("s_mov_b32 m0, s50")
                k.vm("buffer_load_dwordx4 v5, s[12:15], s50 offen lds", f"c{c}")
            def fb2(ks=ks):
                k.vm("buffer_load_dwordx4 v5, s[12:15], s50 offen offset:1024 lds", f"c{c}")
                k.e("s_add_u32 s50, s50, 8192")
            L += [fb, fb2]
            for m in range(2):
                L.append(lambda ks=ks, m=m: xload(k, xa(ks, m), "a", ks, lambda q: 40 + 5 * m + q, 16, f"c{c}"))
        return L

    for c in range(min(PD, 10)):
        for f in issue_chunk_loads(c):
            f()
    k.wait_vm("c0")
    k.e("s_barrier")
    for t in range(8):
        b, o = lds_b(0, t)
        k.e(f"ds_read_b128 v[{bbuf(0,t)}:{bbuf(0,t)+3}], v{b} offset:{o}")
    small = []
    ST = 16
    CSN = 24
    CST = 32
    def small_loads():
        k.e("s_lshl_b32 s51, s6, 10")
        stats_load(k, ST, 2, 20, 51, 9, "small")
        k.e("s_mul_i32 s52, s5, 160")
        k.e("v_lshl_add_u32 v9, v4, 2, s52")
        k.e(f"v_add_u32 v10, {640*4}, v9")
        k.vm(f"buffer_load_dword v{CSN}, v10, s[24:27], 0 offen", "small")
        k.vm(f"buffer_load_dword v{CSN+1}, v10, s[24:27], 0 offen offset:64", "small")
        k.e(f"v_add_u32 v11, {640*4+128}, v9\nv_add_u32 v12, {1280*4-32}, v9")
        k.e("v_cmp_gt_u32 vcc, 8, v4\nv_cndmask_b32 v11, v12, v11, vcc")
        k.vm(f"buffer_load_dword v{CSN+2}, v11, s[24:27], 0 offen", "small")
        k.vm(f"buffer_load_dword v{CSN+3}, v12, s[24:27], 0 offen offset:64", "small")
        k.vm(f"buffer_load_dword v{CSN+4}, v12, s[24:27], 0 offen offset:128", "small")
        k.e("v_lshl_add_u32 v10, v3, 4, s52")
        k.vm(f"buffer_load_dwordx4 v[{CST}:{CST+3}], v10, s[24:27], 0 offen", "small")
        k.vm(f"buffer_load_dwordx4 v[{CST+4}:{CST+7}], v10, s[24:27], 0 offen offset:64", "small")
        k.e(f"v_mov_b32 v11, 0x{OOB:x}\nv_cmp_gt_u32 vcc, 2, v3\nv_cndmask_b32 v10, v11, v10, vcc")
        k.vm(f"buffer_load_dwordx4 v[{CST+8}:{CST+11}], v10, s[24:27], 0 offen offset:128", "small")

    sched = {}
    for c in range(10):
        if c + PD < 10:
            L = issue_chunk_loads(c + PD)
            n = len(L)
            for i, f in enumerate(L):
                pos = (i * 16) // n
                sched.setdefault((2 * c + pos // 8, pos % 8), []).append(f)
    for ks in range(20):
        c = ks // 2
        if ks % 2 == 1 and ks + 1 < 20:
            k.wait_vm(f"c{c+1}")
            k.e("s_barrier")
        first = (ks == 0)
        for t in range(8):
            k.e(f"s_waitcnt lgkmcnt({7 if ks < 19 else 7-t})")
            for m in range(2):
                cc = "0" if first else f"v[{acc(m,t)}:{acc(m,t)+3}]"
                xa_ = f"a[{xa(ks,m)}:{xa(ks,m)+3}]"
                wb = f"v[{bbuf(ks,t)}:{bbuf(ks,t)+3}]"
                if t < 5:
                    k.e(f"v_mfma_f32_16x16x32_bf16 v[{acc(m,t)}:{acc(m,t)+3}], {xa_}, {wb}, {cc}")
                else:
                    k.e(f"v_mfma_f32_16x16x32_bf16 v[{acc(m,t)}:{acc(m,t)+3}], {wb}, {xa_}, {cc}")
                if m == 0 and ks + 1 < 20:
                    b, o = lds_b(ks + 1, t)
                    k.e(f"ds_read_b128 v[{bbuf(ks+1,t)}:{bbuf(ks+1,t)+3}], v{b} offset:{o}")
            for f in sched.get((ks, t), []):
                f()
        if ks == max(2 * (10 - PD) - 1, 0):
            small_loads()
    k.wait_vm("small")
    AT, BT = 44, 46
    AN, BN = 48, 56
    for m in range(2):
        stats_to_ab(k, ST + 4 * m, AT + m, BT + m, 9)
    k.e("v_lshlrev_b32 v9, 4, v3")
    for m in range(2):
        for r in range(4):
            k.e(f"v_add_u32 v10, {4*r}, v9")
            k.e(f"ds_bpermute_b32 v{AN+4*m+r}, v10, v{AT+m}")
            k.e(f"ds_bpermute_b32 v{BN+4*m+r}, v10, v{BT+m}")
    k.e(f"s_mov_b32 s53, 0x{LOG2E:x}\ns_mov_b32 s54, 0x{EPS6:x}")
    k.e("s_waitcnt lgkmcnt(0)")
    FR = 64
    TMP = 96
    k.e("v_cmp_gt_u32 vcc, 8, v4")
    k.e("s_mov_b64 s[56:57], vcc")
    for t in range(5):
        for m in range(2):
            for r in range(4):
                x = acc(m, t) + r
                tm = TMP + (m * 4 + r)
                k.e(f"v_mul_f32 v{tm}, v{BN+4*m+r}, v{CSN+t}")
                k.e(f"v_fma_f32 v{x}, v{AN+4*m+r}, v{x}, v{tm}")
            if t < 3:
                for r in range(4):
                    x = acc(m, t) + r
                    tm = TMP + (m * 4 + r)
                    if t < 2:
                        phi_ops(k, x, tm, 53, 54)
                    else:
                        k.e(f"v_mov_b32 v{tm+8}, v{x}")
                        phi_ops(k, x, tm, 53, 54)
                        k.e(f"v_cndmask_b32 v{x}, v{tm+8}, v{x}, s[56:57]")
            k.e(f"v_cvt_pk_bf16_f32 v{FR+4*t+2*m}, v{acc(m,t)}, v{acc(m,t)+1}")
            k.e(f"v_cvt_pk_bf16_f32 v{FR+4*t+2*m+1}, v{acc(m,t)+2}, v{acc(m,t)+3}")
    ONES = 84
    for q in range(4):
        k.e(f"v_mov_b32 v{ONES+q}, 0x3f803f80")
    pairs = [(0, 2), (0, 3), (1, 2), (1, 3), (1, 4), (2, 3), (2, 4)]
    KVD = 192
    for i, (ta, tb) in enumerate(pairs):
        k.e(f"v_mfma_f32_16x16x32_bf16 v[{KVD+4*i}:{KVD+4*i+3}], v[{FR+4*ta}:{FR+4*ta+3}], v[{FR+4*tb}:{FR+4*tb+3}], 0")
    for ta in range(3):
        i = 7 + ta
        k.e(f"v_mfma_f32_16x16x32_bf16 v[{KVD+4*i}:{KVD+4*i+3}], v[{FR+4*ta}:{FR+4*ta+3}], v[{ONES}:{ONES+3}], 0")
    k.e("s_lshl_b32 s55, s6, 4\ns_add_u32 s55, s55, s5\ns_mul_i32 s55, s55, 1536")
    for m in range(2):
        for t in range(5, 8):
            for r in range(4):
                x = acc(m, t) + r
                tm = TMP + r
                k.e(f"v_mul_f32 v{tm}, v{BT+m}, v{CST+4*(t-5)+r}")
                k.e(f"v_fma_f32 v{x}, v{AT+m}, v{x}, v{tm}")
            for r in range(4):
                phi_ops(k, acc(m, t) + r, TMP + r, 53, 54)
        Q = 104 + 8 * m
        for t in range(5, 8):
            k.e(f"v_cvt_pk_bf16_f32 v{Q+2*(t-5)}, v{acc(m,t)}, v{acc(m,t)+1}")
            k.e(f"v_cvt_pk_bf16_f32 v{Q+2*(t-5)+1}, v{acc(m,t)+2}, v{acc(m,t)+3}")
        if m == 1:
            k.e(f"s_add_u32 s55, s55, {16*1536}")
        k.vm(f"buffer_store_dwordx4 v[{Q}:{Q+3}], v5, s[28:31], s55 offen", "st")
        k.vm(f"buffer_store_dwordx2 v[{Q+4}:{Q+5}], v6, s[28:31], s55 offen offset:1024", "st")
    DP, HK, EP, HV = 9, 12, 16, 19
    k.e(f"v_lshlrev_b32 v{DP}, 4, v3\nv_mov_b32 v{HK}, 0")
    k.e(f"v_cmp_eq_u32 vcc, 0, v3")
    k.e(f"v_add_u32 v22, {1680-16}, v{DP}\nv_mov_b32 v23, 64")
    k.e(f"v_cndmask_b32 v{DP+1}, v22, v23, vcc")
    k.e(f"v_mov_b32 v22, 1\nv_mov_b32 v23, 0\nv_cndmask_b32 v{HK+1}, v22, v23, vcc")
    k.e(f"v_add_u32 v{DP+2}, {1680+48}, v{DP}")
    k.e(f"v_cmp_gt_u32 vcc, 2, v3\nv_mov_b32 v22, 2\nv_mov_b32 v23, 1\nv_cndmask_b32 v{HK+2}, v22, v23, vcc")
    k.e(f"v_mul_u32_u24 v22, 80, v4")
    k.e(f"v_subrev_u32 v{EP}, 640, v22")
    k.e(f"v_cmp_le_u32 vcc, 8, v4\nv_mov_b32 v23, 3\nv_mov_b32 v24, 0\nv_cndmask_b32 v{HV}, v23, v24, vcc")
    k.e(f"v_add_u32 v23, 640, v22\nv_subrev_u32 v24, 960, v22")
    k.e(f"v_cmp_gt_u32 vcc, 12, v4\nv_cndmask_b32 v{EP+1}, v24, v23, vcc")
    k.e(f"v_mov_b32 v23, 1\nv_mov_b32 v24, 0\nv_cndmask_b32 v{HV+1}, v23, v24, vcc")
    k.e(f"v_add_u32 v{EP+2}, 320, v22\nv_mov_b32 v{HV+2}, 1")
    k.e("s_mul_i32 s58, s3, 3584")
    k.e("v_and_b32 v25, 7, v2\nv_lshlrev_b32 v25, 4, v25\nv_add_u32 v25, 3360, v25")
    k.e("s_barrier")
    for i, (ta, tb) in enumerate(pairs):
        k.e(f"v_add_u32 v26, v{DP+ta}, v{EP+tb-2}")
        k.e(f"v_cmp_eq_u32 vcc, v{HK+ta}, v{HV+tb-2}")
        k.e(f"v_cndmask_b32 v26, v25, v26, vcc")
        k.e(f"v_add_u32 v{28+i}, s58, v26")
    for ta in range(3):
        k.e(f"v_add_u32 v26, 1600, v{DP+ta}")
        k.e(f"v_cmp_gt_u32 vcc, 2, v{HK+ta}")
        k.e(f"v_cndmask_b32 v26, v25, v26, vcc")
        k.e(f"v_cmp_eq_u32 vcc, 0, v4")
        k.e(f"v_cndmask_b32 v26, v25, v26, vcc")
        k.e(f"v_add_u32 v{28+7+ta}, s58, v26")
    for i in range(10):
        k.e(f"ds_write_b128 v{28+i}, v[{KVD+4*i}:{KVD+4*i+3}]")
    k.e("s_waitcnt lgkmcnt(0)\ns_barrier")
    k.e("v_lshlrev_b32 v9, 2, v0")
    for q in range(4):
        for w in range(4):
            k.e(f"ds_read_b32 v{64+4*q+w}, v9 offset:{w*3584+q*1024}")
    k.e("s_mul_i32 s59, s5, 3360")
    k.e(f"v_mov_b32 v11, 0x{OOB:x}\nv_cmp_gt_u32 vcc, 72, v0\nv_cndmask_b32 v10, v11, v9, vcc")
    k.e("s_waitcnt lgkmcnt(0)")
    for q in range(4):
        k.e(f"v_add_f32 v{64+4*q}, v{64+4*q}, v{65+4*q}\nv_add_f32 v{66+4*q}, v{66+4*q}, v{67+4*q}")
        k.e(f"v_add_f32 v{64+4*q}, v{64+4*q}, v{66+4*q}")
        va = 9 if q < 3 else 10
        k.vm(f"buffer_atomic_add_f32 v{64+4*q}, v{va}, s[32:35], s59 offen offset:{q*1024} sc1", "at")
    k.label(f"{name}_END")
    k.e("s_endpgm")
    return (k, 256, 256, 256, 163840, 256)


RED = 0
def red_write(k, ACC, ml, s_wr):
    k.e(f"v_add_u32 v7, s{s_wr+ml}, v5")
    for t in range(5):
        a = ACC + (ml * 5 + t) * 4
        k.e(f"ds_write_b128 v7, v[{a}:{a+3}] offset:{t*1024}")

def red_setup(k, s_wr):
    for ml in range(3):
        k.e(f"s_add_u32 s{s_wr+ml}, s3, {1+ml}\ns_and_b32 s{s_wr+ml}, s{s_wr+ml}, 3")
        k.e(f"s_mul_i32 s{s_wr+ml}, s{s_wr+ml}, 3\ns_add_u32 s{s_wr+ml}, s{s_wr+ml}, {ml}\ns_mul_i32 s{s_wr+ml}, s{s_wr+ml}, 5120")
        if RED:
            k.e(f"s_add_u32 s{s_wr+ml}, s{s_wr+ml}, {RED}")
    k.e(f"s_mul_i32 s{s_wr+3}, s3, {15*1024}")
    if RED:
        k.e(f"s_add_u32 s{s_wr+3}, s{s_wr+3}, {RED}")

def xio_setup(k, s_o):
    k.e(f"s_lshl_b32 s{s_o+2}, s4, 2\ns_add_u32 s{s_o+2}, s{s_o+2}, s3")
    k.e(f"s_mul_i32 s{s_o}, s{s_o+2}, 20480")
    k.e(f"s_and_b32 s6, s5, 1")
    k.e(f"s_mul_i32 s7, s5, 5\ns_lshr_b32 s7, s7, 1")
    k.e(f"s_lshl_b32 s7, s7, 10\ns_add_u32 s{s_o}, s{s_o}, s7")
    k.e(f"s_cmp_eq_u32 s6, 1")
    k.sel(7, 512, 2048)
    k.e(f"s_add_u32 s{s_o+1}, s{s_o}, s7")
    k.e(f"s_cmp_eq_u32 s6, 1")
    k.e(f"s_cselect_b32 s7, 1024, 0\ns_add_u32 s{s_o}, s{s_o}, s7")

def res_load(k, RES, srd, s_o, tag, sc=""):
    k.vm(f"buffer_load_dwordx4 v[{RES}:{RES+3}], v5, s[{srd}:{srd+3}], s{s_o} offen{sc}", tag)
    k.vm(f"buffer_load_dwordx4 v[{RES+4}:{RES+7}], v5, s[{srd}:{srd+3}], s{s_o} offen offset:1024{sc}", tag)
    k.vm(f"buffer_load_dwordx2 v[{RES+8}:{RES+9}], v6, s[{srd}:{srd+3}], s{s_o+1} offen{sc}", tag)

def red_finish(k, ACC, RES, T, s_wr, s_o, srd_x, srd_st, final, sc=""):
    k.e(f"v_add_u32 v7, s{s_wr+3}, v5")
    for j in range(3):
        for t in range(5):
            r = T + (j * 5 + t) * 4
            k.e(f"ds_read_b128 v[{r}:{r+3}], v7 offset:{(j*5+t)*1024}")
    own = ACC + 15 * 4
    k.wait_vm("res")
    for t in range(5):
        for h in range(2):
            src = RES + 2 * t + h
            k.e(f"v_lshlrev_b32 v8, 16, v{src}\nv_and_b32 v9, 0xffff0000, v{src}")
            k.e(f"v_add_f32 v{own+4*t+2*h}, v{own+4*t+2*h}, v8\nv_add_f32 v{own+4*t+2*h+1}, v{own+4*t+2*h+1}, v9")
    for j in range(3):
        k.e(f"s_waitcnt lgkmcnt({10-5*j})")
        for t in range(5):
            for r in range(4):
                k.e(f"v_add_f32 v{own+4*t+r}, v{own+4*t+r}, v{T+(j*5+t)*4+r}")
    P = T
    for t in range(5):
        k.e(f"v_cvt_pk_bf16_f32 v{P+2*t}, v{own+4*t}, v{own+4*t+1}")
        k.e(f"v_cvt_pk_bf16_f32 v{P+2*t+1}, v{own+4*t+2}, v{own+4*t+3}")
    if not final:
        k.vm(f"buffer_store_dwordx4 v[{P}:{P+3}], v5, s[{srd_x}:{srd_x+3}], s{s_o} offen{sc}", "st")
        k.vm(f"buffer_store_dwordx4 v[{P+4}:{P+7}], v5, s[{srd_x}:{srd_x+3}], s{s_o} offen offset:1024{sc}", "st")
        k.vm(f"buffer_store_dwordx2 v[{P+8}:{P+9}], v6, s[{srd_x}:{srd_x+3}], s{s_o+1} offen{sc}", "st")
        k.e("s_mov_b32 s6, 0x3f803f80")
        k.e("v_mov_b32 v8, 0\nv_mov_b32 v9, 0\nv_mov_b32 v10, 0\nv_mov_b32 v11, 0")
        for q in range(10):
            k.e(f"v_dot2_f32_bf16 v{8+2*(q&1)}, v{P+q}, s6, v{8+2*(q&1)}")
            k.e(f"v_dot2_f32_bf16 v{9+2*(q&1)}, v{P+q}, v{P+q}, v{9+2*(q&1)}")
        k.e("v_add_f32 v8, v8, v10\nv_add_f32 v9, v9, v11")
        for sw in ("v_permlane16_swap_b32", "v_permlane32_swap_b32"):
            k.e("v_mov_b32 v10, v8\nv_mov_b32 v11, v9")
            k.e(f"{sw} v8, v10\n{sw} v9, v11")
            k.e("v_add_f32 v8, v8, v10\nv_add_f32 v9, v9, v11")
        k.e(f"v_lshlrev_b32 v10, 3, v4\nv_mov_b32 v11, 0x{OOB:x}")
        k.e("v_cmp_eq_u32 vcc, 0, v3\nv_cndmask_b32 v10, v11, v10, vcc")
        k.e(f"s_lshl_b32 s6, s{s_o+2}, 10\ns_lshl_b32 s7, s5, 7\ns_add_u32 s6, s6, s7")
        k.vm(f"buffer_store_dwordx2 v[8:9], v10, s[{srd_st}:{srd_st+3}], s6 offen{sc}", "st")
    else:
        k.e("v_mul_u32_u24 v8, 1280, v4\nv_lshl_add_u32 v8, v3, 3, v8")
        k.e(f"s_mul_i32 s6, s{s_o+2}, 20480\ns_mul_i32 s7, s5, 160\ns_add_u32 s6, s6, s7")
        k.e("s_and_b32 s7, s5, 1")
        for t in range(5):
            k.e(f"s_cmp_eq_u32 s7, 1")
            k.sel(8, 32*((t+1)%5), 32*t)
            k.e("s_add_u32 s8, s8, s6")
            k.vm(f"buffer_store_dwordx2 v[{P+2*t}:{P+2*t+1}], v8, s[{srd_x}:{srd_x+3}], s8 offen", "st")

def build_p2(layer):
    name = f"p2l{layer}_kernel"
    k = K(name)
    XIN = f"X{2*layer}"; XOUT = f"X{2*layer+1}"; STOUT = f"ST{2*layer+1}"; PQ = f"PQ{layer}"
    k.e("s_cmp_ge_u32 s2, 256")
    k.e(f"s_cbranch_scc1 {name}_END")
    k.ldarg(10, "ws")
    wg_decode(k, False)
    k.e("s_mul_i32 s8, s5, 102400")
    k.e("s_waitcnt lgkmcnt(0)")
    k.e(f"s_add_u32 s12, s10, 0x{WS['WO'][0]:x}\ns_addc_u32 s13, s11, 0")
    k.e(f"s_add_u32 s12, s12, s8\ns_addc_u32 s13, s13, 0")
    k.e("s_mov_b32 s14, 102400\ns_mov_b32 s15, 0x20000")
    k.srd(16, 10, WS[PQ][1], WS[PQ][0])
    k.srd(20, 10, KVL, WS["KV"][0] + layer * KVL)
    k.srd(24, 10, WS[XIN][1], WS[XIN][0])
    k.srd(28, 10, WS[XOUT][1], WS[XOUT][0])
    k.srd(32, 10, WS[STOUT][1], WS[STOUT][0])
    KVI = 61440; ZERO = KVI + 4 * 7168
    ACC = 160; PQR = 64; WOA = 0; KVA = 100; RES = 240
    k.e("s_mul_i32 s36, s3, 13440")
    for q in range(14):
        if q % 4 == 0 and q:
            k.e("s_add_u32 s36, s36, 4096")
        k.vm(f"buffer_load_dwordx4 v[{ACC+4*q}:{ACC+4*q+3}], v5, s[20:23], s36 offen offset:{(q%4)*1024}", "kv")
    for ml in range(4):
        k.e(f"s_add_u32 s6, s3, {1+ml}\ns_and_b32 s6, s6, 3\ns_lshl_b32 s7, s4, 2\ns_add_u32 s6, s6, s7")
        k.e(f"s_lshl_b32 s6, s6, 4\ns_lshl_b32 s7, s3, 2\ns_add_u32 s6, s6, s7\ns_mul_i32 s{40+2*ml}, s6, 1536")
        k.e(f"s_add_u32 s{41+2*ml}, s{40+2*ml}, 3072")
    def pq_loads(ml):
        for hp in range(4):
            b = PQR + (ml * 4 + hp) * 6
            so = 40 + 2 * ml + (hp >> 1); o = (hp & 1) * 1536
            k.vm(f"buffer_load_dwordx4 v[{b}:{b+3}], v5, s[16:19], s{so} offen offset:{o}", f"pq{ml}")
            k.vm(f"buffer_load_dwordx2 v[{b+4}:{b+5}], v6, s[16:19], s{so} offen offset:{o+1024}", f"pq{ml}")
    pq_loads(0)
    k.e("v_add_u32 v7, 4096, v5")
    k.e("s_mul_i32 s37, s3, 25600")
    def wo_loads(kk):
        for t in range(5):
            b = WOA + (kk * 5 + t) * 4
            if t < 4:
                k.vm(f"buffer_load_dwordx4 a[{b}:{b+3}], v5, s[12:15], s37 offen offset:{t*1024}", f"wo{kk}")
            else:
                k.vm(f"buffer_load_dwordx4 a[{b}:{b+3}], v7, s[12:15], s37 offen", f"wo{kk}")
        k.e("s_add_u32 s37, s37, 5120")
    for kk in range(5):
        wo_loads(kk)
    pq_loads(1)
    k.e(f"s_mul_i32 s38, s3, 7168\ns_add_u32 s38, s38, {KVI}")
    k.e(f"v_mov_b32 v15, {ZERO}")
    k.e("v_lshl_add_u32 v8, v3, 3, s38")
    k.e("v_mov_b32 v9, s38\nv_add_u32 v9, 32, v9")
    k.e("v_subrev_u32 v10, 8, v8")
    k.e("v_add_u32 v11, 24, v8")
    k.e("s_mov_b64 s[60:61], -1")
    k.e("v_cmp_eq_u32 s[62:63], 0, v3\nv_cmp_le_u32 s[64:65], 1, v3\nv_cmp_gt_u32 s[66:67], 2, v3")
    k.e("v_mul_u32_u24 v12, 40, v4")
    k.e("v_and_b32 v13, 3, v4\nv_mul_u32_u24 v14, 40, v13\nv_add_u32 v14, 640, v14")
    k.e("v_lshrrev_b32 v36, 2, v4")
    AA, AB, AZ = 16, 20, 28
    for par in range(2):
        for x in range(2):
            k.e(f"v_add_u32 v37, v{8+2*par+x}, v12")
            k.e(f"v_cndmask_b32 v{AA+2*par+x}, v15, v37, s[{60+4*par+2*x}:{61+4*par+2*x}]")
    for v in range(4):
        par = v & 1
        k.e(f"v_cmp_eq_u32 s[68:69], {v}, v36\nv_cmp_eq_u32 s[70:71], {v}, v13")
        for x in range(2):
            k.e(f"s_and_b64 s[72:73], s[68:69], s[{60+4*par+2*x}:{61+4*par+2*x}]")
            k.e(f"v_add_u32 v37, v{8+2*par+x}, v14")
            k.e(f"v_cndmask_b32 v{AB+2*v+x}, v15, v37, s[72:73]")
            k.e(f"s_and_b64 s[72:73], s[70:71], s[{60+4*par+2*x}:{61+4*par+2*x}]")
            k.e(f"v_add_u32 v37, 800, v{8+2*par+x}")
            k.e(f"v_cndmask_b32 v{AZ+2*v+x}, v15, v37, s[72:73]")
    k.e(f"v_mov_b32 v38, 0\nv_mov_b32 v39, 0\nv_and_b32 v37, 7, v2\nv_mul_u32_u24 v37, 840, v37\nv_add_u32 v37, {ZERO}, v37")
    k.e("ds_write_b64 v37, v[38:39]")
    k.e("v_add_u32 v40, s38, v6")
    k.wait_vm("kv")
    for q in range(14):
        r = ACC + 4 * q
        k.e(f"v_cvt_pk_bf16_f32 v{r}, v{r}, v{r+1}\nv_cvt_pk_bf16_f32 v{r+1}, v{r+2}, v{r+3}")
        k.e(f"ds_write_b64 v40, v[{r}:{r+1}] offset:{q*512}")
    pq_loads(2)
    k.e("s_waitcnt lgkmcnt(0)")
    for h in range(8):
        par = h & 1; v = h & 3
        for ty, ad in enumerate((AA + 2 * par, AB + 2 * v, AZ + 2 * v)):
            b = KVA + (h * 3 + ty) * 4
            k.e(f"ds_read_b64 a[{b}:{b+1}], v{ad} offset:{h*840}")
            k.e(f"ds_read_b64 a[{b+2}:{b+3}], v{ad+1} offset:{h*840}")
    pq_loads(3)
    red_setup(k, 48)
    xio_setup(k, 52)
    res_load(k, RES, 24, 52, "res")
    k.e("v_cmp_eq_u32 s[60:61], 1, v3\nv_cmp_eq_u32 s[62:63], 2, v3\nv_cmp_eq_u32 s[64:65], 3, v3")
    k.e(f"s_mov_b32 s66, 0x{EPS6:x}")
    OA, OB, DEN = 16, 48, 56
    k.e("s_waitcnt lgkmcnt(0)")
    for ml in range(4):
        k.wait_vm(f"pq{ml}")
        for h in range(8):
            f = PQR + (ml * 4 + (h >> 1)) * 6 + 2 * (h & 1)
            F = f"v[{f}:{f+3}]"
            a = h >> 2
            kb = KVA + h * 12
            k.e(f"v_mfma_f32_16x16x32_bf16 v[{OA+4*h}:{OA+4*h+3}], a[{kb}:{kb+3}], {F}, 0")
            cb = "0" if h % 4 == 0 else f"v[{OB+4*a}:{OB+4*a+3}]"
            k.e(f"v_mfma_f32_16x16x32_bf16 v[{OB+4*a}:{OB+4*a+3}], a[{kb+4}:{kb+7}], {F}, {cb}")
            cz = "0" if h % 4 == 0 else f"v[{DEN+4*a}:{DEN+4*a+3}]"
            k.e(f"v_mfma_f32_16x16x32_bf16 v[{DEN+4*a}:{DEN+4*a+3}], a[{kb+8}:{kb+11}], {F}, {cz}")
        for q in range(8):
            k.e(f"v_add_f32 v{DEN+q}, s66, v{DEN+q}")
        for q in range(8):
            k.e(f"v_rcp_f32 v{DEN+q}, v{DEN+q}")
        for h in range(8):
            for r in range(4):
                k.e(f"v_mul_f32 v{OA+4*h+r}, v{OA+4*h+r}, v{DEN+h}")
        for a in range(2):
            d = DEN + 4 * a
            k.e(f"v_cndmask_b32 v8, v{d}, v{d+1}, s[60:61]\nv_cndmask_b32 v8, v8, v{d+2}, s[62:63]\nv_cndmask_b32 v8, v8, v{d+3}, s[64:65]")
            for r in range(4):
                k.e(f"v_mul_f32 v{OB+4*a+r}, v{OB+4*a+r}, v8")
        of = []
        for (x0, x1) in ((OA, OA + 4), (OA + 8, OA + 12), (OB, OB + 4), (OA + 16, OA + 20), (OA + 24, OA + 28)):
            k.e(f"v_cvt_pk_bf16_f32 v{x0}, v{x0}, v{x0+1}\nv_cvt_pk_bf16_f32 v{x0+1}, v{x0+2}, v{x0+3}")
            k.e(f"v_cvt_pk_bf16_f32 v{x0+2}, v{x1}, v{x1+1}\nv_cvt_pk_bf16_f32 v{x0+3}, v{x1+2}, v{x1+3}")
            of.append(x0)
        for kk in range(5):
            if ml == 0:
                k.wait_vm(f"wo{kk}")
            for t in range(5):
                a_ = ACC + (ml * 5 + t) * 4
                cc = "0" if kk == 0 else f"v[{a_}:{a_+3}]"
                wb = WOA + (kk * 5 + t) * 4
                k.e(f"v_mfma_f32_16x16x32_bf16 v[{a_}:{a_+3}], a[{wb}:{wb+3}], v[{of[kk]}:{of[kk]+3}], {cc}")
        if ml >= 1:
            red_write(k, ACC, ml - 1, 48)
    k.e("s_waitcnt lgkmcnt(0)\ns_barrier")
    red_finish(k, ACC, RES, 64, 48, 52, 28, 32, False)
    k.label(f"{name}_END")
    k.e("s_endpgm")
    return (k, 256, 256, 256, 96256, 256)

def build_p3(layer, PD=3):
    name = f"p3l{layer}_kernel"
    k = K(name)
    XIN = f"X{2*layer+1}"; STIN = f"ST{2*layer+1}"; HO = f"H{layer}"
    k.e("s_cmp_ge_u32 s2, 256")
    k.e(f"s_cbranch_scc1 {name}_END")
    k.ldarg(10, "ws")
    wg_decode(k, True)
    k.e("s_lshl_b32 s6, s4, 3\ns_lshl_b32 s7, s3, 1\ns_add_u32 s6, s6, s7")
    k.e("s_mul_i32 s7, s6, 20480")
    for m in range(2):
        for q in range(5):
            k.e(f"s_add_u32 s{40+5*m+q}, s7, {m*20480+q*4096}")
    k.e(f"s_mul_i32 s8, s5, {20*14*1024}")
    k.e("s_waitcnt lgkmcnt(0)")
    k.e(f"s_add_u32 s12, s10, 0x{WS['WGU'][0]:x}\ns_addc_u32 s13, s11, 0")
    k.e(f"s_add_u32 s12, s12, s8\ns_addc_u32 s13, s13, 0")
    k.e(f"s_mov_b32 s14, {20*14*1024}\ns_mov_b32 s15, 0x20000")
    k.srd(16, 10, WS[XIN][1], WS[XIN][0])
    k.srd(20, 10, WS[STIN][1], WS[STIN][0])
    k.srd(24, 10, WS["CSG"][1], WS["CSG"][0])
    k.srd(28, 10, WS["CSU"][1], WS["CSU"][0])
    k.srd(32, 10, WS[HO][1], WS[HO][0])
    ACC = 144
    NSLOT = 5; CH = 28672
    def acc(m, t): return ACC + (m * 14 + t) * 4
    def bbuf(u, t): return 64 + (u & 1) * 28 + t * 4
    def xa(ks, m): return (2 * ks + m) * 4
    k.e("v_add_u32 v7, 0x10000, v5\nv_add_u32 v8, 0x20000, v5")
    def lds_b(u, t):
        ks, hf = u // 2, u % 2
        off = ((ks // 2) % NSLOT) * CH + (ks % 2) * 14336 + hf * 7168 + t * 1024
        return (5, 7, 8)[off >> 16], off & 0xffff
    k.e("s_mul_i32 s50, s3, 7168")
    k.e("s_mov_b32 s51, s50")
    def issue_chunk_loads(c):
        L = []
        slot = c % NSLOT
        def mk(i):
            def f():
                if i == 0:
                    k.e(f"s_add_u32 m0, s51, {slot*CH}")
                if i == 4:
                    k.e(f"s_add_u32 m0, s51, {slot*CH+4096}\ns_add_u32 s52, s50, 4096")
                so = "s50" if i < 4 else "s52"
                k.vm(f"buffer_load_dwordx4 v5, s[12:15], {so} offen offset:{(i%4)*1024} lds", f"c{c}")
                if i == 6:
                    k.e(f"s_add_u32 s50, s50, {CH}")
            return f
        B = [mk(i) for i in range(7)]
        A = []
        for ks in (2 * c, 2 * c + 1):
            for m in range(2):
                A.append(lambda ks=ks, m=m: xload(k, xa(ks, m), "a", ks, lambda q: 40 + 5 * m + q, 16, f"c{c}"))
        while A or B:
            if B: L.append(B.pop(0))
            if B: L.append(B.pop(0))
            if A: L.append(A.pop(0))
        return L
    for c in range(PD):
        for f in issue_chunk_loads(c):
            f()
    k.wait_vm("c0")
    k.e("s_barrier")
    for t in range(7):
        b, o = lds_b(0, t)
        k.e(f"ds_read_b128 v[{bbuf(0,t)}:{bbuf(0,t)+3}], v{b} offset:{o}")
    ST = 120
    CS = 8
    def small_loads():
        k.e("s_lshl_b32 s53, s6, 10")
        stats_load(k, ST, 2, 20, 53, 128, "small")
    sched = {}
    for c in range(10):
        if c + PD < 10:
            L = issue_chunk_loads(c + PD)
            n = len(L)
            for i, f in enumerate(L):
                pos = (i * 28) // n
                sched.setdefault((4 * c + pos // 7, pos % 7), []).append(f)
    NU = 40
    for u in range(NU):
        ks, hf = u // 2, u % 2
        c = ks // 2
        if u % 4 == 3 and u + 1 < NU:
            k.wait_vm(f"c{c+1}")
            k.e("s_barrier")
        for t in range(7):
            k.e(f"s_waitcnt lgkmcnt({6 if u < NU-1 else 6-t})")
            tt = hf * 7 + t
            for m in range(2):
                cc = "0" if ks == 0 else f"v[{acc(m,tt)}:{acc(m,tt)+3}]"
                k.e(f"v_mfma_f32_16x16x32_bf16 v[{acc(m,tt)}:{acc(m,tt)+3}], v[{bbuf(u,t)}:{bbuf(u,t)+3}], a[{xa(ks,m)}:{xa(ks,m)+3}], {cc}")
                if m == 0 and u + 1 < NU:
                    b, o = lds_b(u + 1, t)
                    k.e(f"ds_read_b128 v[{bbuf(u+1,t)}:{bbuf(u+1,t)+3}], v{b} offset:{o}")
            for f in sched.get((u, t), []):
                f()
        if u == 4 * (10 - PD) - 1:
            small_loads()
    k.e("s_mul_i32 s53, s5, 432")
    k.e("v_lshlrev_b32 v9, 4, v3\nv_add_u32 v9, s53, v9")
    k.e(f"v_mov_b32 v11, 0x{OOB:x}\nv_cmp_gt_u32 vcc, 3, v3\nv_cndmask_b32 v10, v11, v9, vcc")
    for t in range(7):
        va = 9 if t < 6 else 10
        k.vm(f"buffer_load_dwordx4 v[{64+4*t}:{64+4*t+3}], v{va}, s[24:27], 0 offen offset:{64*t}", f"cs{t}")
        k.vm(f"buffer_load_dwordx4 v[{92+4*t}:{92+4*t+3}], v{va}, s[28:31], 0 offen offset:{64*t}", f"cs{t}")
    k.wait_vm("small")
    AT, BT = 12, 14
    for m in range(2):
        stats_to_ab(k, ST + 4 * m, AT + m, BT + m, 9)
    k.e(f"s_mov_b32 s54, 0x{LOG2E ^ 0x80000000:x}")
    k.e("s_lshr_b32 s55, s5, 1\ns_and_b32 s56, s5, 1")
    k.e(f"s_mul_i32 s57, s6, {56*1024}\ns_mul_i32 s58, s55, {7*1024}\ns_add_u32 s57, s57, s58")
    k.e(f"s_lshl_b32 s58, s56, 9\ns_add_u32 s58, s58, {6*1024}\ns_add_u32 s58, s58, s57")
    k.e(f"s_mul_i32 s59, s56, {3*1024}\ns_add_u32 s57, s57, s59")
    for m in range(2):
        P = 16 + 16 * m
        for t in range(7):
            if m == 0:
                k.wait_vm(f"cs{t}")
            for r in range(4):
                g_ = acc(m, t) + r; u_ = acc(m, 7 + t) + r
                t0 = 48 + r; t1 = 52 + r
                k.e(f"v_mul_f32 v{t0}, v{BT+m}, v{64+4*t+r}")
                k.e(f"v_mul_f32 v{t1}, v{BT+m}, v{92+4*t+r}")
                k.e(f"v_fma_f32 v{g_}, v{AT+m}, v{g_}, v{t0}")
                k.e(f"v_fma_f32 v{u_}, v{AT+m}, v{u_}, v{t1}")
            for r in range(4):
                k.e(f"v_mul_f32 v{48+r}, s54, v{acc(m,t)+r}")
            for r in range(4):
                k.e(f"v_exp_f32 v{48+r}, v{48+r}")
            for r in range(4):
                k.e(f"v_add_f32 v{48+r}, 1.0, v{48+r}")
            for r in range(4):
                k.e(f"v_rcp_f32 v{48+r}, v{48+r}")
            for r in range(4):
                k.e(f"v_mul_f32 v{acc(m,t)+r}, v{acc(m,t)+r}, v{acc(m,7+t)+r}")
            for r in range(4):
                k.e(f"v_mul_f32 v{acc(m,t)+r}, v{acc(m,t)+r}, v{48+r}")
            k.e(f"v_cvt_pk_bf16_f32 v{P+2*t}, v{acc(m,t)}, v{acc(m,t)+1}")
            k.e(f"v_cvt_pk_bf16_f32 v{P+2*t+1}, v{acc(m,t)+2}, v{acc(m,t)+3}")
            if t in (1, 3, 5):
                f = t // 2
                k.vm(f"buffer_store_dwordx4 v[{P+4*f}:{P+4*f+3}], v5, s[32:35], s57 offen offset:{f*1024}", "st")
            if t == 6:
                k.vm(f"buffer_store_dwordx2 v[{P+12}:{P+13}], v6, s[32:35], s58 offen", "st")
        if m == 0:
            k.e(f"s_add_u32 s57, s57, {56*1024}\ns_add_u32 s58, s58, {56*1024}")
    k.label(f"{name}_END")
    k.e("s_endpgm")
    return (k, 256, 256, 256, NSLOT * CH, 256)

def build_p4(layer, PD=3):
    name = f"p4l{layer}_kernel"
    k = K(name)
    final = (layer == 1)
    XIN = f"X{2*layer+1}"; HI = f"H{layer}"
    k.e("s_cmp_ge_u32 s2, 256")
    k.e(f"s_cbranch_scc1 {name}_END")
    k.ldarg(10, "ws")
    if final:
        k.ldarg(36, "out")
    wg_decode(k, False)
    k.e(f"s_mul_i32 s8, s5, {56*5120}")
    k.e("s_waitcnt lgkmcnt(0)")
    k.e(f"s_add_u32 s12, s10, 0x{WS['WD'][0]:x}\ns_addc_u32 s13, s11, 0")
    k.e(f"s_add_u32 s12, s12, s8\ns_addc_u32 s13, s13, 0")
    k.e(f"s_mov_b32 s14, {56*5120}\ns_mov_b32 s15, 0x20000")
    k.srd(16, 10, WS[HI][1], WS[HI][0])
    k.srd(24, 10, WS[XIN][1], WS[XIN][0])
    if final:
        k.srd(28, 36, S * D * 2)
    else:
        k.srd(28, 10, WS["X2"][1], WS["X2"][0])
        k.srd(32, 10, WS["ST2"][1], WS["ST2"][0])
    ACC = 160; RES = 240
    NB = PD + 1
    def wb(st, t): return st * 36 + t * 4
    def hb(st, ml): return st * 36 + 20 + ml * 4
    k.e(f"s_mul_i32 s37, s3, {14*5120}")
    for ml in range(4):
        k.e(f"s_add_u32 s6, s3, {1+ml}\ns_and_b32 s6, s6, 3\ns_lshl_b32 s7, s4, 2\ns_add_u32 s6, s6, s7")
        k.e(f"s_mul_i32 s6, s6, 56\ns_mul_i32 s7, s3, 14\ns_add_u32 s6, s6, s7\ns_lshl_b32 s{40+ml}, s6, 10")
    k.e("v_add_u32 v7, 4096, v5")
    def stage_loads(ks):
        st = ks % NB
        L = []
        for t in range(5):
            if t < 4:
                L.append(lambda t=t: k.vm(f"buffer_load_dwordx4 a[{wb(st,t)}:{wb(st,t)+3}], v5, s[12:15], s37 offen offset:{t*1024}", f"k{ks}"))
            else:
                def f():
                    k.vm(f"buffer_load_dwordx4 a[{wb(st,4)}:{wb(st,4)+3}], v7, s[12:15], s37 offen", f"k{ks}")
                    k.e("s_add_u32 s37, s37, 5120")
                L.append(f)
        for ml in range(4):
            def f(ml=ml):
                b = hb(st, ml)
                if ks % 7 != 6:
                    k.vm(f"buffer_load_dwordx4 a[{b}:{b+3}], v5, s[16:19], s{40+ml} offen", f"k{ks}")
                else:
                    k.vm(f"buffer_load_dwordx2 a[{b}:{b+1}], v6, s[16:19], s{40+ml} offen", f"k{ks}")
                    k.vm(f"buffer_load_dwordx2 a[{b+2}:{b+3}], v6, s[16:19], s{40+ml} offen offset:512", f"k{ks}")
                k.e(f"s_add_u32 s{40+ml}, s{40+ml}, 1024")
            L.append(f)
        return L
    for ks in range(PD):
        for f in stage_loads(ks):
            f()
    red_setup(k, 48)
    xio_setup(k, 52)
    for ks in range(14):
        pend = stage_loads(ks + PD) if ks + PD < 14 else []
        if ks + PD == 14:
            pend = [lambda: res_load(k, RES, 24, 52, "res")]
        k.wait_vm(f"k{ks}")
        st = ks % NB
        i = 0
        for ml in range(4):
            for t in range(5):
                a_ = ACC + (ml * 5 + t) * 4
                cc = "0" if ks == 0 else f"v[{a_}:{a_+3}]"
                k.e(f"v_mfma_f32_16x16x32_bf16 v[{a_}:{a_+3}], a[{wb(st,t)}:{wb(st,t)+3}], a[{hb(st,ml)}:{hb(st,ml)+3}], {cc}")
                i += 1
                if i % 2 == 0 and pend:
                    pend.pop(0)()
        while pend:
            pend.pop(0)()
    for ml in range(3):
        red_write(k, ACC, ml, 48)
    k.e("s_waitcnt lgkmcnt(0)\ns_barrier")
    red_finish(k, ACC, RES, 64, 48, 52, 28, 32, final)
    k.label(f"{name}_END")
    k.e("s_endpgm")
    return (k, 256, 256, 256, 61440, 256)

def all_kernels():
    L = []
    for layer in range(2):
        L += [build_p1(layer), build_p2(layer), build_p3(layer), build_p4(layer)]
    return L
```

```python
import sys, os
sys.path.insert(0, os.path.dirname(__file__))
from common import *
from asmlib import kernel_text

HEADER = open("interleave_layers__linear_attn_block__swiglu_ffn__prompt.s.ref").read().split("; @launch")[0]

def assemble(kernels, path):
    head = HEADER
    texts, rods = [], []
    seen = set()
    for (k, vg, ag, grid, lds, blk) in kernels:
        head += f"; @launch kernel={k.name} grid=({grid},1,1) block=({blk},1,1) lds={lds}\n"
        if k.name in seen:
            continue
        seen.add(k.name)
        t, r = kernel_text(k, vg, ag)
        texts.append(t); rods.append(r)
    s = head + '.amdgcn_target "amdgcn-amd-amdhsa--gfx950"\n.text\n' + "\n".join(texts) + '.section .rodata,"a"\n.p2align 6\n' + ".p2align 6\n".join(rods)
    open(path, "w").write(s)
    return len(s)

if __name__ == "__main__":
    from k0 import build_k0
    ks = []
    k, vg, ag, grid, lds = build_k0()
    ks.append((k, vg, ag, grid, lds, 256))
    try:
        import phases
        ks += phases.all_kernels()
    except ImportError as e:
        print("no phases:", e)
    out = sys.argv[1] if len(sys.argv) > 1 else "cur.s"
    n = assemble(ks, out)
    print("wrote", out, n, "bytes")
```

```python
from asmlib import Kern, kernel_text

S, D, H, DH, F = 2048, 640, 32, 20, 1728
KB = 1024

def _al(x, a=4096):
    return (x + a - 1) // a * a
WS = {}
_off = 0
def _alloc(name, size):
    global _off
    WS[name] = (_off, size)
    _off = _al(_off + size)
_alloc("WQ", 16 * 20 * 8 * KB)
_alloc("WO", 8 * 20 * 5 * KB)
_alloc("WGU", 16 * 20 * 14 * KB)
_alloc("WD", 8 * 56 * 5 * KB)
_alloc("CSQ", 1920 * 4)
_alloc("CSG", 1728 * 4)
_alloc("CSU", 1728 * 4)
XS = 128 * 20 * KB
STS = 128 * KB
HS = 128 * 56 * KB
KVB = 3584
KVL = 16 * KVB
_alloc("X", 4 * XS)
_alloc("ST", 4 * STS)
_alloc("O", 2 * XS)
SYNC_IN_KVZ = 2 * KVL
_alloc("KVZ", 8 * 4 * 4096)
_alloc("H", 2 * HS)
for i in range(4):
    WS[f"X{i}"] = (WS["X"][0] + i * XS, XS)
    WS[f"ST{i}"] = (WS["ST"][0] + i * STS, STS)
for i in range(2):
    WS[f"O{i}"] = (WS["O"][0] + i * XS, XS)
    WS[f"H{i}"] = (WS["H"][0] + i * HS, HS)
WS["KV"] = (WS["KVZ"][0], 2 * KVL)
SYNC_OFF = WS["KVZ"][0] + SYNC_IN_KVZ
CL_OFF = SYNC_OFF
COL_OFF = SYNC_OFF + 16 * 128
assert SYNC_IN_KVZ + 32 * 128 <= WS["KVZ"][1]
_alloc("PROF", 256 * 4 * 2 * 256)
WS_END = _off

ARG = dict(x=0, wqkv=8, wo=16, bx=24, wg=32, wu=40, wd=48, out=56, dbg=64, ws=72)
OOB = 0x40000000

class K(Kern):
    def __init__(self, name):
        super().__init__(name)
        self.vmq = []
        self.dsq = []
        self.ds_done = -1
    def vm(self, text, tag=None):
        self.e(text)
        self.vmq.append(tag)
    def vm_after(self, tag):
        idx = max(i for i, t in enumerate(self.vmq) if t == tag)
        return len(self.vmq) - 1 - idx
    def wait_vm(self, tag, extra=""):
        n = min(self.vm_after(tag), 63)
        key = ("vm", n)
        self.e(f"s_waitcnt vmcnt({n}) {extra}".strip())
    def ds(self, text, tag=None):
        self.e(text)
        self.dsq.append(tag)
    def wait_ds(self, tag):
        idx = max(i for i, t in enumerate(self.dsq) if t == tag)
        n = min(len(self.dsq) - 1 - idx, 15)
        if idx <= self.ds_done:
            return
        self.e(f"s_waitcnt lgkmcnt({n})")
        self.ds_done = len(self.dsq) - 1 - n
    def ds_drain(self):
        self.e("s_waitcnt lgkmcnt(0)")
        self.ds_done = len(self.dsq) - 1
    def srd_l(self, d, off, size, stride=0, tmp=73):
        if stride:
            self.e(f"s_mul_i32 s{tmp}, s9, 0x{stride:x}")
            self.e(f"s_add_u32 s{tmp}, s{tmp}, 0x{off:x}")
            self.e(f"s_add_u32 s{d}, s10, s{tmp}")
        else:
            self.e(f"s_add_u32 s{d}, s10, 0x{off:x}")
        self.e(f"s_addc_u32 s{d+1}, s11, 0")
        self.e(f"s_mov_b32 s{d+2}, 0x{size:x}")
        self.e(f"s_mov_b32 s{d+3}, 0x00020000")
    def srd_add(self, d, sreg):
        self.e(f"s_add_u32 s{d}, s{d}, s{sreg}")
        self.e(f"s_addc_u32 s{d+1}, s{d+1}, 0")
    def srd(self, d, blo, size, off=0):
        if off:
            self.e(f"s_add_u32 s{d}, s{blo}, 0x{off:x}")
            self.e(f"s_addc_u32 s{d+1}, s{blo+1}, 0")
        else:
            self.e(f"s_mov_b32 s{d}, s{blo}")
            self.e(f"s_mov_b32 s{d+1}, s{blo+1}")
        self.e(f"s_mov_b32 s{d+2}, 0x{size:x}")
        self.e(f"s_mov_b32 s{d+3}, 0x00020000")
    def sel(self, d, a, b):
        self.e(f"s_mov_b32 s{d}, {b}")
        self.e(f"s_cselect_b32 s{d}, {a}, s{d}")
    def ldarg(self, d, name):
        self.e(f"s_load_dwordx2 s[{d}:{d+1}], s[0:1], {ARG[name]}")

def vr(b, n=1, p="v"):
    return f"{p}{b}" if n == 1 else f"{p}[{b}:{b+n-1}]"
def ar(b, n=1):
    return vr(b, n, "a")
def sr(b, n=1):
    return vr(b, n, "s")

import os
PROF = bool(int(os.environ.get("PROF", "0")))
def stamp(k, i, real=False):
    if not PROF:
        return
    k.e(f"{'s_memrealtime' if real else 's_memtime'} s[{80+2*i}:{81+2*i}]")
    k.e("s_waitcnt lgkmcnt(0)")
def stamp_flush(k, kidx, n, ws_pair):
    if not PROF:
        return
    k.e("s_waitcnt vmcnt(0)")
    stamp(k, n)
    stamp(k, n + 1, real=True)
    k.srd(76, ws_pair, WS["PROF"][1], WS["PROF"][0])
    k.e(f"s_lshl_b32 s74, s2, 2\ns_add_u32 s74, s74, s3\ns_add_u32 s74, s74, {kidx*2048}\ns_lshl_b32 s74, s74, 6")
    k.e("s_mov_b64 exec, 1")
    k.e("v_mov_b32 v1, 0")
    for i in range(n + 2):
        k.e(f"v_mov_b32 v2, s{80+2*i}")
        k.e(f"buffer_store_dword v2, v1, s[76:79], s74 offen offset:{4*i}")
```

```python
from common import *

B_J5 = 80
B_J6A = 112
B_J7 = 127
B_J2 = 135
B_J3 = B_J2 + 160
B_J4 = B_J3 + 40
B_J6B = B_J4 + 112
K0_GRID = B_J6B + 28

def frag_body(k, ntiles, sc, split5=False):
    L = 16
    for t in range(ntiles):
        if t == 7:
            k.e("s_waitcnt vmcnt(48)")
        for j in range(8):
            k.vm(f"buffer_load_ushort v{L+8*t+j}, v{6+t}, s[8:11], s{16+j} offen", f"t{t}")
    P = L + 64
    for t in range(ntiles):
        k.wait_vm(f"t{t}")
        for p in range(4):
            k.e(f"v_lshl_or_b32 v{P+4*t+p}, v{L+8*t+2*p+1}, 16, v{L+8*t+2*p}")
        off = t * 1024
        hi, lo = off // 4096 * 4096, off % 4096
        if split5 and t >= 5:
            so = "s44"; lo = (t - 5) * 1024
        elif hi:
            k.e(f"s_add_u32 s25, s24, {hi}")
            so = "s25"
        else:
            so = "s24"
        k.vm(f"buffer_store_dwordx4 v[{P+4*t}:{P+4*t+3}], v5, s[12:15], {so} offen offset:{lo}{sc}", "st")

def row_soffs(k, stride):
    k.e(f"s_mul_i32 s16, s26, {stride}")
    k.e(f"s_add_u32 s28, s26, s27")
    k.e(f"s_mul_i32 s20, s28, {stride}")
    for j in range(1, 4):
        k.e(f"s_add_u32 s{16+j}, s16, {j*stride}")
        k.e(f"s_add_u32 s{20+j}, s20, {j*stride}")

def build_k0():
    k = K("k0_kernel")
    k.e(f"s_cmp_ge_u32 s2, {K0_GRID}")
    k.e("s_cbranch_scc1 K0_END")
    k.ldarg(4, "ws")
    k.e("v_lshrrev_b32 v1, 6, v0")
    k.e("v_and_b32 v2, 63, v0")
    k.e("v_readfirstlane_b32 s3, v1")
    k.e("v_lshrrev_b32 v3, 4, v2")
    k.e("v_and_b32 v4, 15, v2")
    k.e("v_lshlrev_b32 v5, 4, v2")
    emit_jobs(k, "s2", "")
    k.label("K0_END")
    k.e("s_endpgm")
    return k, 192, 0, K0_GRID, 2048

def emit_jobs(k, J, sc):
    k.e(f"s_cmp_ge_u32 {J}, {B_J6B}\ns_cbranch_scc1 K0_J6")
    k.e(f"s_cmp_ge_u32 {J}, {B_J3}\ns_cbranch_scc1 K0_J34")
    k.e(f"s_cmp_ge_u32 {J}, {B_J2}\ns_cbranch_scc1 K0_J2")
    k.e(f"s_cmp_ge_u32 {J}, {B_J7}\ns_cbranch_scc1 K0_J7")
    k.e(f"s_cmp_ge_u32 {J}, {B_J6A}\ns_cbranch_scc1 K0_J6")
    k.e(f"s_cmp_ge_u32 {J}, {B_J5}\ns_cbranch_scc1 K0_J5")

    k.vmq = []
    k.ldarg(6, "wqkv")
    k.e(f"s_lshr_b32 s29, {J}, 2")
    k.e(f"s_and_b32 s30, {J}, 3")
    k.e("s_lshl_b32 s30, s30, 2\ns_add_u32 s30, s30, s3")
    k.e("s_lshl_b32 s26, s29, 5\ns_mov_b32 s27, 16")
    row_soffs(k, 3840)
    k.e("s_mul_i32 s31, s30, 80")
    k.e("v_mul_u32_u24 v14, 15360, v3")
    k.e("v_lshl_add_u32 v14, v4, 1, v14")
    k.e("v_add_u32 v14, s31, v14")
    kb, vb = 640 * 2, 1280 * 2
    k.e(f"v_add_u32 v6, {kb}, v14")
    k.e(f"v_add_u32 v7, {kb+32}, v14")
    k.e(f"v_add_u32 v8, {kb+64}, v14")
    k.e(f"v_add_u32 v15, {vb-16}, v14")
    k.e(f"v_cmp_gt_u32 vcc, 8, v4")
    k.e(f"v_cndmask_b32 v8, v15, v8, vcc")
    k.e(f"v_add_u32 v9, {vb+16}, v14")
    k.e(f"v_add_u32 v10, {vb+48}, v14")
    k.e(f"v_mov_b32 v11, v14")
    k.e(f"v_add_u32 v12, 32, v14")
    k.e(f"v_add_u32 v13, 64, v14")
    k.e(f"v_mov_b32 v15, 0x{OOB:x}")
    k.e(f"v_cndmask_b32 v13, v15, v13, vcc")
    k.e("s_mul_i32 s24, s30, 163840\ns_mul_i32 s44, s29, 3072\ns_add_u32 s44, s44, s24\ns_add_u32 s44, s44, 102400")
    k.e("s_mul_i32 s25, s29, 5120\ns_add_u32 s24, s24, s25")
    k.e("s_waitcnt lgkmcnt(0)")
    k.srd(8, 6, 640 * 1920 * 2)
    k.srd(12, 4, WS["WQ"][1], WS["WQ"][0])
    frag_body(k, 8, sc, split5=True)
    k.e("s_branch K0_END")

    k.label("K0_J2")
    k.vmq = []
    k.e(f"s_sub_u32 s29, {J}, {B_J2}")
    k.e("s_and_b32 s31, s29, 1")
    k.e("s_lshl_b32 s28, s31, 3")
    k.e("s_add_u32 s6, s0, s28\ns_addc_u32 s7, s1, 0")
    k.e(f"s_load_dwordx2 s[6:7], s[6:7], {ARG['wg']}")
    k.e("s_lshr_b32 s30, s29, 1\ns_and_b32 s30, s30, 3")
    k.e("s_lshl_b32 s30, s30, 2\ns_add_u32 s30, s30, s3")
    k.e("s_lshr_b32 s29, s29, 3")
    k.e("s_lshl_b32 s26, s29, 5\ns_mov_b32 s27, 16")
    row_soffs(k, 3456)
    k.e("s_mul_i32 s32, s30, 216")
    k.e("v_mul_u32_u24 v14, 13824, v3")
    k.e("v_lshl_add_u32 v14, v4, 1, v14")
    k.e("v_add_u32 v6, s32, v14")
    for t in range(1, 7):
        k.e(f"v_add_u32 v{6+t}, {32*t}, v6")
    k.e(f"v_mov_b32 v15, 0x{OOB:x}")
    k.e("v_cmp_gt_u32 vcc, 12, v4")
    k.e("v_cndmask_b32 v12, v15, v12, vcc")
    k.e("s_mul_i32 s24, s30, 20\ns_add_u32 s24, s24, s29\ns_mul_i32 s24, s24, 14")
    k.e("s_mul_i32 s31, s31, 7\ns_add_u32 s24, s24, s31\ns_lshl_b32 s24, s24, 10")
    k.e("s_waitcnt lgkmcnt(0)")
    k.srd(8, 6, 640 * 1728 * 2)
    k.srd(12, 4, WS["WGU"][1], WS["WGU"][0])
    frag_body(k, 7, sc)
    k.e("s_branch K0_END")

    k.label("K0_J34")
    k.vmq = []
    k.e(f"s_cmp_ge_u32 {J}, {B_J4}\ns_cbranch_scc1 K0_J4")
    k.ldarg(6, "wo")
    k.e(f"s_sub_u32 s29, {J}, {B_J3}")
    k.e("s_and_b32 s30, s29, 1\ns_lshl_b32 s30, s30, 2\ns_add_u32 s30, s30, s3")
    k.e("s_lshr_b32 s29, s29, 1")
    k.e("s_mul_i32 s31, s29, 52\ns_lshr_b32 s31, s31, 8")
    k.e("s_mul_i32 s32, s31, 5\ns_sub_u32 s32, s29, s32")
    k.e("s_mul_i32 s33, s31, 160")
    k.e("s_cmp_gt_u32 s32, 2\ns_cselect_b32 s34, 1, 0\ns_sub_u32 s34, s32, s34\ns_mul_i32 s34, s34, 40\ns_add_u32 s26, s33, s34")
    k.e("s_add_u32 s35, s33, 16")
    k.e("s_cmp_eq_u32 s32, 2")
    k.e("s_cselect_b32 s26, s35, s26\ns_mov_b32 s27, 20\ns_cselect_b32 s36, 40, 4")
    k.e("s_mov_b32 s37, 4")
    k.e("s_mul_i32 s24, s30, 20\ns_add_u32 s24, s24, s29\ns_mul_i32 s24, s24, 5120")
    k.e("s_waitcnt lgkmcnt(0)")
    k.srd(8, 6, 640 * 640 * 2)
    k.srd(12, 4, WS["WO"][1], WS["WO"][0])
    k.e("s_branch K0_J34C")
    k.label("K0_J4")
    k.ldarg(6, "wd")
    k.e(f"s_sub_u32 s29, {J}, {B_J4}")
    k.e("s_and_b32 s30, s29, 1\ns_lshl_b32 s30, s30, 2\ns_add_u32 s30, s30, s3")
    k.e("s_lshr_b32 s29, s29, 1")
    k.e("s_mul_i32 s31, s29, 37\ns_lshr_b32 s31, s31, 8")
    k.e("s_mul_i32 s32, s31, 7\ns_sub_u32 s32, s29, s32")
    k.e("s_mul_i32 s33, s31, 216")
    k.e("s_cmp_ge_u32 s32, 3\ns_cselect_b32 s34, 12, 0\ns_lshl_b32 s35, s32, 5\ns_add_u32 s26, s33, s35\ns_add_u32 s26, s26, s34")
    k.e("s_add_u32 s35, s33, 96")
    k.e("s_cmp_eq_u32 s32, 6")
    k.e("s_cselect_b32 s26, s35, s26\ns_cselect_b32 s27, 108, 16\ns_cselect_b32 s37, 3, 4")
    k.e("s_mov_b32 s36, 4")
    k.e("s_mul_i32 s24, s30, 56\ns_add_u32 s24, s24, s29\ns_mul_i32 s24, s24, 5120")
    k.e("s_waitcnt lgkmcnt(0)")
    k.srd(8, 6, 1728 * 640 * 2)
    k.srd(12, 4, WS["WD"][1], WS["WD"][0])
    k.label("K0_J34C")
    row_soffs(k, 1280)
    k.e("s_mul_i32 s36, s36, 1280")
    k.e("v_mul_lo_u32 v14, v3, s36")
    k.e("v_lshl_add_u32 v14, v4, 1, v14")
    k.e("s_mul_i32 s38, s30, 160")
    k.e("v_add_u32 v14, s38, v14")
    k.e(f"v_mov_b32 v15, 0x{OOB:x}")
    k.e("v_cmp_gt_u32 vcc, s37, v3")
    k.e("v_cndmask_b32 v14, v15, v14, vcc")
    k.e("s_and_b32 s39, s30, 1\ns_cmp_eq_u32 s39, 1")
    for t in range(5):
        k.sel(39, 32*((t+1)%5), 32*t)
        k.e(f"v_add_u32 v{6+t}, s39, v14")
    frag_body(k, 5, sc)
    k.e("s_branch K0_END")

    k.label("K0_J5")
    k.vmq = []
    k.ldarg(6, "x")
    k.e(f"s_sub_u32 s29, {J}, {B_J5}\ns_lshl_b32 s29, s29, 2\ns_add_u32 s29, s29, s3")
    k.e("s_mul_i32 s30, s29, 20480")
    k.e("v_mul_u32_u24 v6, 1280, v4")
    k.e("v_lshl_add_u32 v6, v3, 3, v6")
    k.e("v_lshlrev_b32 v7, 3, v2")
    k.e("s_waitcnt lgkmcnt(0)")
    k.srd(8, 6, S * D * 2)
    k.srd(12, 4, WS["X"][1] // 4, WS["X"][0])
    k.srd(40, 4, WS["ST"][1] // 4, WS["ST"][0])
    L = 16
    for nt in range(40):
        k.vm(f"buffer_load_dwordx2 v[{L+2*nt}:{L+2*nt+1}], v6, s[8:11], s30 offen offset:{32*nt}", f"n{nt}")
    k.e("v_mov_b32 v8, 0\nv_mov_b32 v9, 0\nv_mov_b32 v10, 0\nv_mov_b32 v11, 0")
    k.e("s_mov_b32 s33, 0x3f803f80")
    for ks in range(20):
        k.wait_vm(f"n{2*ks+1}")
        b = L + 4 * ks
        for q in range(4):
            k.e(f"v_dot2_f32_bf16 v{8+(q&1)}, v{b+q}, s33, v{8+(q&1)}")
            k.e(f"v_dot2_f32_bf16 v{10+(q&1)}, v{b+q}, v{b+q}, v{10+(q&1)}")
        if ks % 4 == 0:
            k.e(f"s_add_u32 s31, s30, {ks*1024}")
        lo = (ks % 4) * 1024
        if ks % 5 != 2:
            k.vm(f"buffer_store_dwordx4 v[{b}:{b+3}], v5, s[12:15], s31 offen offset:{lo}{sc}", "st")
        else:
            k.vm(f"buffer_store_dwordx2 v[{b}:{b+1}], v7, s[12:15], s31 offen offset:{lo}{sc}", "st")
            k.vm(f"buffer_store_dwordx2 v[{b+2}:{b+3}], v7, s[12:15], s31 offen offset:{lo+512}{sc}", "st")
    k.e("v_add_f32 v8, v8, v9\nv_add_f32 v10, v10, v11")
    for sw in ("v_permlane16_swap_b32", "v_permlane32_swap_b32"):
        k.e("v_mov_b32 v9, v8\nv_mov_b32 v11, v10")
        k.e(f"{sw} v8, v9\n{sw} v10, v11")
        k.e("v_add_f32 v8, v8, v9\nv_add_f32 v10, v10, v11")
    k.e("v_cmp_eq_u32 vcc, 0, v3")
    k.e("v_mov_b32 v14, 0\nv_mov_b32 v15, 0")
    k.e("v_cndmask_b32 v12, v14, v8, vcc\nv_cndmask_b32 v13, v14, v10, vcc")
    k.e("v_lshlrev_b32 v9, 8, v3\nv_lshl_add_u32 v9, v4, 3, v9")
    k.e("s_lshl_b32 s31, s29, 10")
    k.vm(f"buffer_store_dwordx2 v[12:13], v9, s[40:43], s31 offen{sc}", "st")
    k.vm(f"buffer_store_dwordx2 v[14:15], v9, s[40:43], s31 offen offset:128{sc}", "st")
    k.e("s_branch K0_END")

    k.label("K0_J6")
    k.vmq = []
    k.e(f"s_cmp_ge_u32 {J}, {B_J6B}\ns_cbranch_scc1 K0_J6B")
    k.e(f"s_sub_u32 s29, {J}, {B_J6A}")
    k.ldarg(6, "wqkv")
    k.e("s_mov_b32 s30, 3840")
    k.e("s_waitcnt lgkmcnt(0)")
    k.srd(8, 6, 640 * 1920 * 2)
    k.srd(12, 4, WS["CSQ"][1], WS["CSQ"][0])
    k.e("s_branch K0_J6C")
    k.label("K0_J6B")
    k.e(f"s_sub_u32 s29, {J}, {B_J6B}")
    k.e("s_cmp_ge_u32 s29, 14\ns_cbranch_scc1 K0_J6U")
    k.ldarg(6, "wg")
    k.e("s_waitcnt lgkmcnt(0)")
    k.srd(12, 4, WS["CSG"][1], WS["CSG"][0])
    k.e("s_branch K0_J6D")
    k.label("K0_J6U")
    k.ldarg(6, "wu")
    k.e("s_sub_u32 s29, s29, 14")
    k.e("s_waitcnt lgkmcnt(0)")
    k.srd(12, 4, WS["CSU"][1], WS["CSU"][0])
    k.label("K0_J6D")
    k.e("s_mov_b32 s30, 3456")
    k.srd(8, 6, 640 * 1728 * 2)
    k.label("K0_J6C")
    k.e("v_mul_lo_u32 v6, v3, s30")
    k.e("v_lshl_add_u32 v6, v4, 4, v6")
    k.e("s_lshl_b32 s31, s29, 8")
    k.e("v_add_u32 v6, s31, v6")
    k.e("s_mul_i32 s32, s3, 160\ns_mul_i32 s32, s32, s30")
    k.e("s_lshl_b32 s33, s30, 2")
    L = 24
    for it in range(40):
        k.vm(f"buffer_load_dwordx4 v[{L+4*it}:{L+4*it+3}], v6, s[8:11], s32 offen", f"r{it}")
        k.e("s_add_u32 s32, s32, s33")
    for q in range(8):
        k.e(f"v_mov_b32 v{8+q}, 0")
    k.e("s_mov_b32 s34, 0x00003f80\ns_mov_b32 s35, 0x3f800000")
    for it in range(40):
        k.wait_vm(f"r{it}")
        for q in range(4):
            k.e(f"v_dot2_f32_bf16 v{8+2*q}, v{L+4*it+q}, s34, v{8+2*q}")
            k.e(f"v_dot2_f32_bf16 v{9+2*q}, v{L+4*it+q}, s35, v{9+2*q}")
    for sw in ("v_permlane16_swap_b32", "v_permlane32_swap_b32"):
        for q in range(8):
            k.e(f"v_mov_b32 v{16+q}, v{8+q}")
        for q in range(8):
            k.e(f"{sw} v{8+q}, v{16+q}")
        for q in range(8):
            k.e(f"v_add_f32 v{8+q}, v{8+q}, v{16+q}")
    k.e("s_lshl_b32 s36, s3, 9")
    k.e("v_lshlrev_b32 v16, 5, v4\nv_add_u32 v16, s36, v16")
    k.e("ds_write_b128 v16, v[8:11]\nds_write_b128 v16, v[12:15] offset:16")
    k.e("s_waitcnt lgkmcnt(0)\ns_barrier")
    k.e("v_lshlrev_b32 v17, 2, v0")
    k.e("v_and_b32 v17, 0x1fc, v17")
    k.e("ds_read_b32 v18, v17\nds_read_b32 v19, v17 offset:512\nds_read_b32 v20, v17 offset:1024\nds_read_b32 v21, v17 offset:1536")
    k.e("s_waitcnt lgkmcnt(0)")
    k.e("v_add_f32 v18, v18, v19\nv_add_f32 v20, v20, v21\nv_add_f32 v18, v18, v20")
    k.e("s_lshl_b32 s31, s29, 9")
    k.vm(f"buffer_store_dword v18, v17, s[12:15], s31 offen{sc}", "st")
    k.e("s_barrier")
    k.e("s_branch K0_END")

    k.label("K0_J7")
    k.e(f"s_sub_u32 s29, {J}, {B_J7}\ns_lshl_b32 s29, s29, 2\ns_add_u32 s29, s29, s3\ns_lshl_b32 s29, s29, 12")
    k.e("s_waitcnt lgkmcnt(0)")
    k.srd(12, 4, WS["KVZ"][1], WS["KVZ"][0])
    k.e("v_mov_b32 v8, 0\nv_mov_b32 v9, 0\nv_mov_b32 v10, 0\nv_mov_b32 v11, 0")
    for q in range(4):
        k.e(f"buffer_store_dwordx4 v[8:11], v5, s[12:15], s29 offen offset:{q*1024}{sc}")
```

```python
from common import *

LOG2E = 0x3fb8aa3b
EPS6 = 0x358637bd
EPS5 = 0x3727c5ac
INV640 = 0x3acccccd
NAME = "main_kernel"

CFG = dict(XL=0, PDX1=10, PDX3=6, PDH=5, KSIG=8)
for _k in list(CFG):
    if os.environ.get(_k):
        CFG[_k] = int(os.environ[_k])

S_W, S_RB, S_CG, S_RB64, S_CG8, S_L = 3, 4, 5, 6, 7, 9
SRD = 12
SRDO = 16
S_MT0, S_MT = 20, 21
S_CLT, S_COLT = 22, 23
S_W7, S_WGU = 51, 52
S_CLO, S_COLO = 56, 57
SRDQ = 60
RES = 16
SC1 = " sc1"
STF = os.environ.get("STF", "" if CFG["XL"] else " sc1")
LDF = os.environ.get("LDF", " sc1")
SGF = os.environ.get("SGF", STF)
R_ = f"s[{SRD}:{SRD+3}]"

LDS_B = 102400
KVR = 86016
CH = 28672; NSLOT = 5
CSL = 143360

_lab = [0]
def newlab(p):
    _lab[0] += 1
    return f"{p}_{_lab[0]}"

def lin(k, dst, const, terms, tmp=8):
    first = True
    for (r, m) in terms:
        if first:
            if m == 1:
                k.e(f"s_mov_b32 s{dst}, s{r}")
            else:
                k.e(f"s_mul_i32 s{dst}, s{r}, 0x{m:x}")
        else:
            if m == 1:
                k.e(f"s_add_u32 s{dst}, s{dst}, s{r}")
            else:
                k.e(f"s_mul_i32 s{tmp}, s{r}, 0x{m:x}\ns_add_u32 s{dst}, s{dst}, s{tmp}")
        first = False
    if first:
        k.e(f"s_mov_b32 s{dst}, 0x{const:x}")
    elif const:
        k.e(f"s_add_u32 s{dst}, s{dst}, 0x{const:x}")

def pstamp(k, idx):
    if not PROF:
        return
    k.e("s_memtime s[98:99]")
    k.ds_drain()
    k.e(f"v_writelane_b32 v31, s98, {idx}")

def lds_addr(off):
    return (5, 7, 8)[off >> 16], off & 0xffff

def signal(k, s_off, fl=" sc1"):
    k.e("v_mov_b32 v26, 0\nv_mov_b32 v27, 1\ns_mov_b64 exec, 1")
    k.e(f"buffer_atomic_add v27, v26, {R_}, s{s_off} offen{fl}")
    k.e("s_mov_b64 exec, -1")

def signal_w0(k, s_off, fl=" sc1"):
    L = newlab("SIG")
    k.e(f"s_cmp_lg_u32 s{S_W}, 0\ns_cbranch_scc1 {L}")
    signal(k, s_off, fl)
    k.label(L)

def poll_loop(k, s_off, s_tgt):
    L = newlab("POLL"); D = newlab("POLLD")
    k.e("v_mov_b32 v26, 0\ns_mov_b32 s74, 0")
    k.label(L)
    k.e(f"buffer_load_dword v27, v26, {R_}, s{s_off} offen sc1")
    k.e("s_waitcnt vmcnt(0)")
    k.e("v_readfirstlane_b32 s75, v27")
    k.e(f"s_cmp_ge_u32 s75, s{s_tgt}\ns_cbranch_scc1 {D}")
    k.e(f"s_add_u32 s74, s74, 1\ns_cmp_lt_u32 s74, 0x40000\ns_cbranch_scc1 {L}")
    k.label(D)

def cluster_sync(k, dma=None, pi=0):
    k.wait_vm("st")
    pstamp(k, 20 + 3 * pi)
    k.e("s_barrier")
    pstamp(k, 21 + 3 * pi)
    O = newlab("OTH"); J = newlab("JOIN")
    k.e(f"s_add_u32 s{S_CLT}, s{S_CLT}, 16")
    k.e(f"s_cmp_lg_u32 s{S_W}, 0\ns_cbranch_scc1 {O}")
    signal(k, S_CLO, SGF)
    poll_loop(k, S_CLO, S_CLT)
    k.e(f"s_branch {J}")
    k.label(O)
    if dma:
        dma()
    k.label(J)
    pstamp(k, 22 + 3 * pi)
    k.e("s_barrier")
    k.vmq = []

class Rec:
    def __init__(self):
        self.L = []
    def e(self, text):
        for ln in text.split("\n"):
            ln = ln.strip()
            if ln:
                self.L.append(("e", ln, None))
    def ds(self, text, tag=None):
        self.L.append(("ds", text, tag))
    def vm(self, text, tag=None):
        self.L.append(("vm", text, tag))
    def sel(self, d, a, b):
        self.e(f"s_mov_b32 s{d}, {b}")
        self.e(f"s_cselect_b32 s{d}, {a}, s{d}")
    def groups(self, k, size=1):
        L = self.L
        def wr_vcc(t): return t.startswith("v_cmp") and t.split()[1].startswith("vcc")
        def rd_vcc(t): return t.startswith("v_cndmask") and t.rstrip().endswith("vcc")
        def wr_scc(t): return t.startswith("s_cmp") or t.startswith("s_add_") or t.startswith("s_sub_") or t.startswith("s_and_") or t.startswith("s_lshl") or t.startswith("s_lshr") or t.startswith("s_or_")
        def rd_scc(t): return t.startswith("s_cselect") or t.startswith("s_addc") or t.startswith("s_cbranch")
        def m0w(t): return " m0," in t
        def m0r(t): return t.rstrip().endswith(" lds")
        cut = [True] * len(L)
        for (w, r) in ((wr_vcc, rd_vcc), (wr_scc, rd_scc), (m0w, m0r)):
            for i in range(len(L)):
                for j in range(i + 1, len(L)):
                    if r(L[j][1]):
                        cut[i] = False
                        break
                    if w(L[j][1]):
                        break
        cut = [True] * len(L)
        for (w, r) in ((wr_vcc, rd_vcc), (wr_scc, rd_scc), (m0w, m0r)):
            last_w = None
            for j in range(len(L)):
                if r(L[j][1]) and last_w is not None:
                    for i in range(last_w, j):
                        cut[i] = False
                if w(L[j][1]):
                    last_w = j
        out, cur = [], []
        def mk(items):
            def f():
                for (kind, t, tag) in items:
                    (k.e(t) if kind == "e" else (k.ds(t, tag) if kind == "ds" else k.vm(t, tag)))
            return f
        for i, it in enumerate(L):
            cur.append(it)
            if cut[i] and len(cur) >= size:
                out.append(mk(cur)); cur = []
        if cur:
            out.append(mk(cur))
        return out

class Fill:
    def __init__(self, L=()):
        self.q = list(L)
    def add(self, L):
        self.q += list(L)
    def pop(self, n=1):
        for _ in range(n):
            if self.q:
                self.q.pop(0)()
    def flush(self):
        while self.q:
            self.q.pop(0)()

MF = "v_mfma_f32_16x16x32_bf16"
def vp(r): return f"v[{r}:{r+1}]"
def v4(r): return f"v[{r}:{r+3}]"
def a4(r): return f"a[{r}:{r+3}]"
def bc(i, n, hi):
    lo = [0] * n; h = [1] * n
    lo[i] = hi; h[i] = hi
    return f"op_sel:[{','.join(map(str, lo))}] op_sel_hi:[{','.join(map(str, h))}]"

def stats_to_ab(k, st, a, b):
    k.e(f"v_add_f32 v{st}, v{st}, v{st+2}")
    k.e(f"v_add_f32 v{st+1}, v{st+1}, v{st+3}")
    for sw in ("v_permlane16_swap_b32", "v_permlane32_swap_b32"):
        k.e(f"v_mov_b32 v{st+2}, v{st}\nv_mov_b32 v{st+3}, v{st+1}")
        k.e(f"{sw} v{st}, v{st+2}\n{sw} v{st+1}, v{st+3}")
        k.e(f"v_add_f32 v{st}, v{st}, v{st+2}\nv_add_f32 v{st+1}, v{st+1}, v{st+3}")
    k.e(f"v_mul_f32 v{st}, 0x{INV640:x}, v{st}")
    k.e(f"v_mul_f32 v{st+1}, 0x{INV640:x}, v{st+1}")
    k.e(f"v_fma_f32 v{st+1}, -v{st}, v{st}, v{st+1}")
    k.e(f"v_max_f32 v{st+1}, 0, v{st+1}")
    k.e(f"v_add_f32 v{st+1}, 0x{EPS5:x}, v{st+1}")
    k.e(f"v_rsq_f32 v{a}, v{st+1}")
    k.e(f"v_mul_f32 v{b}, v{st}, v{a}")
    k.e(f"v_sub_f32 v{b}, 0, v{b}")

def stats_load(k, st, soff, vtmp, tag):
    k.e(f"v_lshlrev_b32 v{vtmp}, 8, v3\nv_lshl_add_u32 v{vtmp}, v4, 3, v{vtmp}")
    for m in range(2):
        k.vm(f"buffer_load_dwordx2 v[{st+4*m}:{st+4*m+1}], v{vtmp}, {R_}, s{soff} offen offset:{1024*m}{LDF}", tag)
        k.vm(f"buffer_load_dwordx2 v[{st+4*m+2}:{st+4*m+3}], v{vtmp}, {R_}, s{soff} offen offset:{1024*m+128}{LDF}", tag)

def phi_pk(k, xs, ts):
    for x, t in zip(xs, ts):
        for h in (0, 2):
            k.e(f"v_pk_mul_f32 {vp(t+h)}, {vp(x+h)}, s[72:73]")
    for x, t in zip(xs, ts):
        for r in range(4):
            k.e(f"v_exp_f32_e64 v{t+r}, v{t+r} clamp")
    for x, t in zip(xs, ts):
        for r in range(4):
            k.e(f"v_max_f32 v{x+r}, 0, v{x+r}")
    for x, t in zip(xs, ts):
        for h in (0, 2):
            k.e(f"v_pk_add_f32 {vp(t+h)}, {vp(t+h)}, s[70:71]")
    for x, t in zip(xs, ts):
        for h in (0, 2):
            k.e(f"v_pk_add_f32 {vp(x+h)}, {vp(x+h)}, {vp(t+h)}")

def xload(k, dst, ks, so, tag):
    lo = (ks % 4) * 1024
    if ks % 5 != 2:
        k.vm(f"buffer_load_dwordx4 a[{dst}:{dst+3}], v5, {R_}, s{so} offen offset:{lo}{LDF}", tag)
    else:
        k.vm(f"buffer_load_dwordx2 a[{dst}:{dst+1}], v6, {R_}, s{so} offen offset:{lo}{LDF}", tag)
        k.vm(f"buffer_load_dwordx2 a[{dst+2}:{dst+3}], v6, {R_}, s{so} offen offset:{lo+512}{LDF}", tag)

def xa(ks, m):
    return (2 * ks + m) * 4

def x_loader(k, xbuf_const):
    lin(k, 24, xbuf_const, [(S_L, 2 * XS), (S_MT0, 20480)])
    k.e("s_add_u32 s25, s24, 20480")
    def f(ks):
        L = []
        for m in range(2):
            def g(m=m):
                if ks % 4 == 0 and ks:
                    k.e(f"s_add_u32 s{24+m}, s{24+m}, 4096")
                xload(k, xa(ks, m), ks, 24 + m, f"x{ks}")
            L.append(g)
        return L
    return f

def dma_run(k, srd, lds0, s_lds, glob_const, s_glob, nblk, tag, s_tmp=53):
    L = []
    for i in range(nblk):
        def f(i=i):
            if i % 4 == 0:
                k.e(f"s_add_u32 m0, s{s_lds}, {lds0 + 1024*i}")
                k.e(f"s_add_u32 s{s_tmp}, s{s_glob}, 0x{glob_const + 1024*i:x}")
            k.vm(f"buffer_load_dwordx4 v5, s[{srd}:{srd+3}], s{s_tmp} offen offset:{(i%4)*1024} lds", tag)
        L.append(f)
    return L

def wgu_chunk(k, c):
    return dma_run(k, SRD, (c % NSLOT) * CH, S_W7, c * CH, S_WGU, 7, f"c{c}")

def wq_dma(k, region, three=False):
    n = 25 if region == 0 else (20 if three else 15)
    base = 0 if region == 0 else LDS_B
    def setup():
        if three:
            k.e(f"s_sub_u32 s54, s{S_W}, 1\ns_mul_i32 s54, s54, {n*1024}")
        else:
            k.e(f"s_mul_i32 s54, s{S_W}, {n*1024}")
        lin(k, 55, WS["WQ"][0], [(S_CG, 163840), (54, 1)])
    L = dma_run(k, SRDQ, base, 54, base, 55, n, "wq")
    f0 = L[0]
    L[0] = lambda: (setup(), f0())
    return L

def wgu34_three(k):
    k.e(f"s_sub_u32 s54, s{S_W}, 1\ns_mul_i32 s54, s54, {19*1024}\ns_min_u32 s54, s54, {37*1024}")
    lin(k, 55, WS["WGU"][0], [(S_CG, 20 * 14 * 1024), (54, 1)])
    for f in dma_run(k, SRD, 3 * CH, 54, 3 * CH, 55, 19, "c34"):
        f()

def wd_reg(f):
    if f < 24:
        return f"a[{160+4*f}:{163+4*f}]"
    if f < 36:
        return f"v[{208+4*(f-24)}:{211+4*(f-24)}]"
    return f"a[{4*(f-36)}:{4*(f-36)+3}]"

S_WD, S_WO = 48, 49
def wd_loads(k, f0, f1):
    L = []
    for f in range(f0, f1):
        def g(f=f):
            if f == f0 or f % 4 == 0:
                k.e(f"s_add_u32 s58, s{S_WD}, {(f // 4) * 4096}")
            k.vm(f"buffer_load_dwordx4 {wd_reg(f)}, v5, {R_}, s58 offen offset:{(f%4)*1024}", "wd")
        L.append(g)
    return L

def wo_reg(f):
    return f"a[{160+4*f}:{163+4*f}]" if f < 24 else "v[252:255]"

def wo_loads(k, srd):
    L = []
    for f in range(25):
        def g(f=f):
            if f % 4 == 0:
                k.e(f"s_add_u32 s59, s{S_WO}, {(f // 4) * 4096}")
            k.vm(f"buffer_load_dwordx4 {wo_reg(f)}, v5, s[{srd}:{srd+3}], s59 offen offset:{(f%4)*1024}", "wo")
        L.append(g)
    return L

def p1(k):
    BB = 32; ACC1 = 72; ACC2 = 112; ST = 136; CSN = 144; CST = 152
    AT, BT, AN, BN = 164, 166, 168, 176
    TMP = 184; FR = 200; ONES = 220; QF = 224; AD = 236
    def acc(m, t): return ACC1 + (m * 5 + t) * 4 if t < 5 else ACC2 + (m * 3 + t - 5) * 4
    PD = CFG["PDX1"]
    xl = x_loader(k, WS["X"][0])
    for ks in range(PD):
        for f in xl(ks):
            f()
    def small_loads():
        lin(k, 26, WS["ST"][0], [(S_L, 2 * STS), (S_MT0, 1024)])
        stats_load(k, ST, 26, 10, "small")
        lin(k, 27, WS["CSQ"][0], [(S_CG, 160)])
        k.e("v_lshlrev_b32 v10, 2, v4")
        k.vm(f"buffer_load_dword v{CSN}, v10, {R_}, s27 offen offset:{640*4}", "small")
        k.vm(f"buffer_load_dword v{CSN+2}, v10, {R_}, s27 offen offset:{640*4+64}", "small")
        k.e(f"v_add_u32 v11, {640*4+128}, v10\nv_add_u32 v12, {1280*4-32}, v10")
        k.e("v_cmp_gt_u32 vcc, 8, v4\nv_cndmask_b32 v11, v12, v11, vcc")
        k.vm(f"buffer_load_dword v{CSN+4}, v11, {R_}, s27 offen", "small")
        k.vm(f"buffer_load_dword v{CSN+6}, v12, {R_}, s27 offen offset:64", "small")
        k.vm(f"buffer_load_dword v{CSN+7}, v12, {R_}, s27 offen offset:128", "small")
        k.e("v_lshlrev_b32 v10, 4, v3")
        k.vm(f"buffer_load_dwordx4 v[{CST}:{CST+3}], v10, {R_}, s27 offen", "small")
        k.vm(f"buffer_load_dwordx4 v[{CST+4}:{CST+7}], v10, {R_}, s27 offen offset:64", "small")
        k.e(f"v_mov_b32 v11, 0x{OOB:x}\nv_cmp_gt_u32 vcc, 2, v3\nv_cndmask_b32 v10, v11, v10, vcc")
        k.vm(f"buffer_load_dwordx4 v[{CST+8}:{CST+11}], v10, {R_}, s27 offen offset:128", "small")
    small_loads()
    csn = {0: (CSN, 0), 1: (CSN + 2, 0), 2: (CSN + 4, 0), 3: (CSN + 6, 0), 4: (CSN + 6, 1)}
    pairs = [(0, 2), (0, 3), (1, 2), (1, 3), (1, 4), (2, 3), (2, 4)]
    r1 = Rec()
    T = TMP
    DP, HK, EP, HV = T, T + 3, T + 6, T + 9
    a, b, c, tr, tt_ = T + 12, T + 13, T + 14, T + 15, 13
    r1.e(f"v_lshlrev_b32 v{DP}, 4, v3\nv_mov_b32 v{HK}, 0")
    r1.e(f"v_add_u32 v{a}, {1680-16}, v{DP}\nv_mov_b32 v{b}, 64")
    r1.e(f"v_cmp_eq_u32 vcc, 0, v3")
    r1.e(f"v_cndmask_b32 v{DP+1}, v{a}, v{b}, vcc")
    r1.e(f"v_cndmask_b32 v{HK+1}, 1, v{HK}, vcc")
    r1.e(f"v_add_u32 v{DP+2}, {1680+48}, v{DP}")
    r1.e(f"v_mov_b32 v{b}, 1\nv_cmp_gt_u32 vcc, 2, v3\nv_cndmask_b32 v{HK+2}, 2, v{b}, vcc")
    r1.e(f"v_mul_u32_u24 v{a}, 80, v4")
    r1.e(f"v_subrev_u32 v{EP}, 640, v{a}")
    r1.e(f"v_cmp_le_u32 vcc, 8, v4\nv_cndmask_b32 v{HV}, 3, v{HK}, vcc")
    r1.e(f"v_add_u32 v{b}, 640, v{a}\nv_subrev_u32 v{c}, 960, v{a}")
    r1.e(f"v_mov_b32 v{HV+2}, 1")
    r1.e(f"v_cmp_gt_u32 vcc, 12, v4\nv_cndmask_b32 v{EP+1}, v{c}, v{b}, vcc")
    r1.e(f"v_cndmask_b32 v{HV+1}, 1, v{HK}, vcc")
    r1.e(f"v_add_u32 v{EP+2}, 320, v{a}")
    r1.e(f"s_mul_i32 s28, s{S_W}, 3584\ns_add_u32 s28, s28, {KVR}")
    r1.e(f"v_and_b32 v{tr}, 7, v2\nv_lshlrev_b32 v{tr}, 4, v{tr}\nv_add_u32 v{tr}, 3360, v{tr}")
    for i, (ta, tb) in enumerate(pairs):
        r1.e(f"v_add_u32 v{tt_}, v{DP+ta}, v{EP+tb-2}")
        r1.e(f"v_cmp_eq_u32 vcc, v{HK+ta}, v{HV+tb-2}")
        r1.e(f"v_cndmask_b32 v{tt_}, v{tr}, v{tt_}, vcc")
        r1.e(f"v_add_u32 v{AD+i}, s28, v{tt_}")
    for ta in range(3):
        r1.e(f"v_add_u32 v{tt_}, 1600, v{DP+ta}")
        r1.e(f"v_cmp_gt_u32 vcc, 2, v{HK+ta}")
        r1.e(f"v_cndmask_b32 v{tt_}, v{tr}, v{tt_}, vcc")
        r1.e(f"v_cmp_eq_u32 vcc, 0, v4")
        r1.e(f"v_cndmask_b32 v{tt_}, v{tr}, v{tt_}, vcc")
        r1.e(f"v_add_u32 v{AD+7+ta}, s28, v{tt_}")
    for q in range(4):
        r1.e(f"v_mov_b32 v{ONES+q}, 0x3f803f80")
    r1.e(f"s_mov_b32 s72, 0x{LOG2E:x}\ns_mov_b32 s73, 0x{LOG2E:x}\ns_mov_b32 s70, 0x{EPS6:x}\ns_mov_b32 s71, 0x{EPS6:x}")
    r1.e("v_cmp_gt_u32 s[64:65], 8, v4")
    lin(r1, 29, WS["KV"][0], [(S_L, KVL), (S_CG, KVB)], tmp=30)
    r2 = Rec()
    for m in range(2):
        stats_to_ab(r2, ST + 4 * m, AT + m, BT + m)
    r2.e("v_lshlrev_b32 v10, 4, v3")
    for r in range(1, 4):
        r2.e(f"v_add_u32 v{10+r}, {4*r}, v10")
    for m in range(2):
        for r in range(4):
            r2.ds(f"ds_bpermute_b32 v{AN+4*m+r}, v{10+r}, v{AT+m}", "bp")
            r2.ds(f"ds_bpermute_b32 v{BN+4*m+r}, v{10+r}, v{BT+m}", "bp")
    vf1 = Fill(r1.groups(k)); vf2 = Fill(r2.groups(k))
    def rdB(ks, t):
        b, o = lds_addr(ks * 5120 + t * 1024)
        r = BB + (ks & 1) * 20 + t * 4
        k.ds(f"ds_read_b128 {v4(r)}, v{b} offset:{o}", f"b{ks}")
    for ks in range(20):
        k.wait_vm(f"x{ks}")
        if ks == 0:
            k.e("s_barrier")
            pstamp(k, 1)
            for t in range(5):
                rdB(0, t)
        if ks == PD + 1:
            k.wait_vm("small")
        fill = Fill(xl(ks + PD) if ks + PD < 20 else [])
        k.wait_ds(f"b{ks}")
        n = 0
        for t in range(5):
            r = BB + (ks & 1) * 20 + t * 4
            for m in range(2):
                cc = "0" if ks == 0 else v4(acc(m, t))
                k.e(f"{MF} {v4(acc(m,t))}, {a4(xa(ks,m))}, {v4(r)}, {cc}")
                if n < 5 and ks + 1 < 20:
                    rdB(ks + 1, n)
                elif n in (5, 7):
                    fill.pop()
                if n >= 5 or n % 2 == 1:
                    if vf1.q:
                        vf1.pop()
                    elif ks > PD + 1:
                        vf2.pop()
                n += 1
        fill.flush()
    vf1.flush(); vf2.flush()
    pstamp(k, 2)
    def rdB2(ks, tt):
        b, o = lds_addr(LDS_B + ks * 3072 + tt * 1024)
        r = BB + (ks & 1) * 12 + tt * 4
        k.ds(f"ds_read_b128 {v4(r)}, v{b} offset:{o}", f"q{ks}")
    k.ds_drain()
    for t in range(5):
        cb, ch = csn[t]
        for m in range(2):
            for h in (0, 2):
                k.e(f"v_pk_mul_f32 {vp(TMP+4*m+h)}, {vp(BN+4*m+h)}, {vp(cb)} {bc(1, 2, ch)}")
        for m in range(2):
            for h in (0, 2):
                x = acc(m, t) + h
                k.e(f"v_pk_fma_f32 {vp(x)}, {vp(AN+4*m+h)}, {vp(x)}, {vp(TMP+4*m+h)}")
        if t < 3:
            if t == 2:
                for m in range(2):
                    for r in range(4):
                        k.e(f"v_mov_b32 v{TMP+8+4*m+r}, v{acc(m,t)+r}")
            phi_pk(k, [acc(0, t), acc(1, t)], [TMP, TMP + 4])
            if t == 2:
                for m in range(2):
                    for r in range(4):
                        k.e(f"v_cndmask_b32 v{acc(m,t)+r}, v{TMP+8+4*m+r}, v{acc(m,t)+r}, s[64:65]")
        for m in range(2):
            x = acc(m, t)
            k.e(f"v_cvt_pk_bf16_f32 v{FR+4*t+2*m}, v{x}, v{x+1}")
            k.e(f"v_cvt_pk_bf16_f32 v{FR+4*t+2*m+1}, v{x+2}, v{x+3}")
    KVD = BB
    for i, (ta, tb) in enumerate(pairs):
        k.e(f"{MF} {v4(KVD+4*i)}, {v4(FR+4*ta)}, {v4(FR+4*tb)}, 0")
    for ta in range(3):
        i = 7 + ta
        k.e(f"{MF} {v4(KVD+4*i)}, {v4(FR+4*ta)}, {v4(ONES)}, 0")
    k.e("s_barrier")
    k.e(f"v_lshlrev_b32 v10, 2, v0\nv_add_u32 v11, {KVR}, v10")
    for i in range(10):
        k.ds(f"ds_write_b128 v{AD+i}, {v4(KVD+4*i)}", "kw")
    gf = Fill()
    for c in range(3):
        gf.add(wgu_chunk(k, c))
    gf.pop(4)
    k.ds_drain()
    k.e("s_barrier")
    RD = TMP
    for q in range(4):
        for w in range(4):
            k.ds(f"ds_read_b32 v{RD+4*q+w}, v11 offset:{w*3584+q*1024}", f"kr{q}")
    for tt in range(3):
        rdB2(0, tt)
    k.e(f"v_mov_b32 v12, 0x{OOB:x}\nv_cmp_gt_u32 vcc, 72, v0\nv_cndmask_b32 v11, v12, v10, vcc")
    for q in range(4):
        k.wait_ds(f"kr{q}")
        k.e(f"v_pk_add_f32 {vp(RD+4*q)}, {vp(RD+4*q)}, {vp(RD+4*q+2)}")
        k.e(f"v_add_f32 v{RD+4*q}, v{RD+4*q}, v{RD+4*q+1}")
        va = 10 if q < 3 else 11
        k.vm(f"buffer_atomic_add_f32 v{RD+4*q}, v{va}, {R_}, s29 offen offset:{q*1024} sc1", "at")
    pstamp(k, 3)
    r3 = Rec()
    D0L, D0H, D1L, D1H, RA, RB0, RB1 = TMP, TMP + 1, TMP + 2, TMP + 3, TMP + 4, TMP + 5, TMP + 6
    VO = AD
    r3.e(f"v_mov_b32 v10, 0x{OOB:x}")
    r3.e(f"v_lshlrev_b32 v{D0L}, 4, v3")
    r3.e(f"v_mov_b32 v11, 64\nv_subrev_u32 v12, 16, v{D0L}")
    r3.e(f"v_cmp_eq_u32 vcc, 0, v3\nv_cndmask_b32 v{D0H}, v10, v11, vcc\nv_cndmask_b32 v{D1L}, v12, v10, vcc")
    r3.e(f"v_add_u32 v11, 48, v{D0L}\nv_cmp_gt_u32 vcc, 2, v3\nv_cndmask_b32 v{D1H}, v10, v11, vcc")
    r3.e(f"v_mul_u32_u24 v{RA}, 80, v4")
    r3.e(f"v_and_b32 v11, 3, v4\nv_mul_u32_u24 v11, 80, v11\nv_add_u32 v11, 1280, v11\nv_lshrrev_b32 v12, 2, v4")
    r3.e(f"v_cmp_eq_u32 vcc, 0, v12\nv_cndmask_b32 v{RB0}, v10, v11, vcc")
    r3.e(f"v_cmp_eq_u32 vcc, 1, v12\nv_cndmask_b32 v{RB1}, v10, v11, vcc")
    n = 0
    for hh in range(2):
        for ty in range(2):
            for dp in ((D0L, D0H) if hh == 0 else (D1L, D1H)):
                row = RA if ty == 0 else (RB0 if hh == 0 else RB1)
                r3.e(f"v_add_u32 v{VO+n}, v{row}, v{dp}"); n += 1
    r3.e(f"s_lshr_b32 s30, s{S_CG}, 2\ns_and_b32 s31, s{S_CG}, 3")
    lin(r3, 32, WS["O"][0], [(S_L, XS), (S_MT0, 20480), (30, 5120)], tmp=34)
    r3.e("s_lshl_b32 s33, s31, 8\ns_add_u32 s33, s33, s32\ns_add_u32 s33, s33, 2048")
    r3.e("s_cmp_ge_u32 s31, 2\ns_cselect_b32 s34, 1, 0\ns_add_u32 s34, s34, s31\ns_lshl_b32 s34, s34, 10\ns_add_u32 s32, s32, s34")
    VC = VO + 8
    r3.e(f"v_lshlrev_b32 v11, 4, v4\nv_lshl_add_u32 v11, v3, 3, v11")
    r3.e(f"v_cmp_gt_u32 vcc, 2, v3\nv_cndmask_b32 v{VC}, v10, v11, vcc")
    r3.e("v_cmp_eq_u32 s[64:65], 0, v3")
    vf3 = Fill(r3.groups(k))
    for ks in range(20):
        if ks == CFG["KSIG"]:
            k.wait_vm("at")
            k.e("s_barrier")
            signal_w0(k, S_COLO)
        if ks == 17:
            k.e(f"s_add_u32 s{S_COLT}, s{S_COLT}, 16\nv_mov_b32 v26, 0")
            k.vm(f"buffer_load_dword v28, v26, {R_}, s{S_COLO} offen sc1", "cp")
        k.wait_ds(f"q{ks}")
        n = 0
        for tt in range(3):
            r = BB + (ks & 1) * 12 + tt * 4
            for m in range(2):
                A = acc(m, 5 + tt)
                cc = "0" if ks == 0 else v4(A)
                k.e(f"{MF} {v4(A)}, {v4(r)}, {a4(xa(ks,m))}, {cc}")
                if n < 3 and ks + 1 < 20:
                    rdB2(ks + 1, n)
                elif n == 3:
                    gf.pop()
                elif ks >= 1:
                    vf3.pop(2 if n == 5 else 1)
                n += 1
    gf.flush(); vf3.flush()
    pstamp(k, 4)
    D = newlab("CPOK")
    k.wait_vm("cp")
    k.e(f"v_readfirstlane_b32 s75, v28\ns_cmp_ge_u32 s75, s{S_COLT}\ns_cbranch_scc1 {D}")
    poll_loop(k, S_COLO, S_COLT)
    k.label(D)
    pstamp(k, 5)
    KVF = 32
    n = 0
    for hh in range(2):
        dl, dh = (D0L, D0H) if hh == 0 else (D1L, D1H)
        for ty in (2, 0, 1):
            for half, dp in enumerate((dl, dh)):
                r = KVF + (hh * 3 + ty) * 8 + 4 * half
                if ty == 2:
                    k.vm(f"buffer_load_dwordx4 {v4(r)}, v{dp}, {R_}, s29 offen offset:{hh*1680+1600} sc1", "kv")
                else:
                    vo = VO + hh * 4 + ty * 2 + half
                    k.vm(f"buffer_load_dwordx4 {v4(r)}, v{vo}, {R_}, s29 offen offset:{hh*1680} sc1", "kv")
    for t in range(5, 8):
        ts = [ST, ST + 4]
        for m in range(2):
            for h in (0, 2):
                k.e(f"v_pk_mul_f32 {vp(ts[m]+h)}, {vp(CST+4*(t-5)+h)}, {vp(BT)} {bc(1, 2, m)}")
        for m in range(2):
            for h in (0, 2):
                x = acc(m, t) + h
                k.e(f"v_pk_fma_f32 {vp(x)}, {vp(x)}, {vp(AT)}, {vp(ts[m]+h)} {bc(1, 3, m)}")
        phi_pk(k, [acc(0, t), acc(1, t)], ts)
        for m in range(2):
            x = acc(m, t)
            k.e(f"v_cvt_pk_bf16_f32 v{QF+6*m+2*(t-5)}, v{x}, v{x+1}")
            k.e(f"v_cvt_pk_bf16_f32 v{QF+6*m+2*(t-5)+1}, v{x+2}, v{x+3}")
    k.wait_vm("kv")
    for fi in (2, 5, 0, 3, 1, 4):
        r = KVF + fi * 8
        k.e(f"v_cvt_pk_bf16_f32 v{r}, v{r}, v{r+1}\nv_cvt_pk_bf16_f32 v{r+1}, v{r+2}, v{r+3}")
        k.e(f"v_cvt_pk_bf16_f32 v{r+2}, v{r+4}, v{r+5}\nv_cvt_pk_bf16_f32 v{r+3}, v{r+6}, v{r+7}")
    OD = 80
    for ty in (2, 0, 1):
        for m in range(2):
            for hh in range(2):
                F = v4(QF + 6 * m + 2 * hh)
                o = OD + 20 * m
                fa = KVF + (hh * 3 + ty) * 8
                if ty == 2:
                    k.e(f"{MF} {v4(o+12+4*hh)}, {v4(fa)}, {F}, 0")
                elif ty == 0:
                    k.e(f"{MF} {v4(o+4*hh)}, {v4(fa)}, {F}, 0")
                else:
                    k.e(f"{MF} {v4(o+8)}, {v4(fa)}, {F}, {'0' if hh == 0 else v4(o+8)}")
    for m in range(2):
        o = OD + 20 * m
        k.e(f"v_add_f32 v{o+12}, s70, v{o+12}\nv_add_f32 v{o+16}, s70, v{o+16}")
    for m in range(2):
        o = OD + 20 * m
        k.e(f"v_rcp_f32 v{o+12}, v{o+12}\nv_rcp_f32 v{o+16}, v{o+16}")
    for m in range(2):
        o = OD + 20 * m
        k.e(f"v_cndmask_b32 v{o+14}, v{o+16}, v{o+12}, s[64:65]")
        for h in (0, 2):
            k.e(f"v_pk_mul_f32 {vp(o+h)}, {vp(o+h)}, {vp(o+12)} {bc(1, 2, 0)}")
            k.e(f"v_pk_mul_f32 {vp(o+4+h)}, {vp(o+4+h)}, {vp(o+16)} {bc(1, 2, 0)}")
    for m in range(2):
        o = OD + 20 * m
        k.e(f"v_cvt_pk_bf16_f32 v{o}, v{o}, v{o+1}\nv_cvt_pk_bf16_f32 v{o+1}, v{o+2}, v{o+3}")
        k.e(f"v_cvt_pk_bf16_f32 v{o+2}, v{o+4}, v{o+5}\nv_cvt_pk_bf16_f32 v{o+3}, v{o+6}, v{o+7}")
        if m == 1:
            k.e("s_add_u32 s32, s32, 20480")
        k.vm(f"buffer_store_dwordx4 {v4(o)}, v5, {R_}, s32 offen{STF}", "st")
    for m in range(2):
        o = OD + 20 * m
        for h in (0, 2):
            k.e(f"v_pk_mul_f32 {vp(o+8+h)}, {vp(o+8+h)}, {vp(o+14)} {bc(1, 2, 0)}")
        k.e(f"v_cvt_pk_bf16_f32 v{o+8}, v{o+8}, v{o+9}\nv_cvt_pk_bf16_f32 v{o+9}, v{o+10}, v{o+11}")
        if m == 1:
            k.e("s_add_u32 s33, s33, 20480")
        k.vm(f"buffer_store_dwordx2 {vp(o+8)}, v{VC}, {R_}, s33 offen{STF}", "st")
    pstamp(k, 6)
    cluster_sync(k, None, 0)
    pstamp(k, 7)

ACCK = 32
def red_write(k, ml):
    k.e(f"v_add_u32 v10, s{40+ml}, v5")
    for t in range(5):
        a = ACCK + (ml * 5 + t) * 4
        k.ds(f"ds_write_b128 v10, {v4(a)} offset:{t*1024}", "rw")

def red_setup(k):
    for ml in range(3):
        d = 40 + ml
        k.e(f"s_add_u32 s{d}, s{S_W}, {1+ml}\ns_and_b32 s{d}, s{d}, 3")
        k.e(f"s_mul_i32 s{d}, s{d}, {3*5120}\ns_add_u32 s{d}, s{d}, {LDS_B + ml*5120}")
    k.e(f"s_mul_i32 s43, s{S_W}, {15*1024}\ns_add_u32 s43, s43, {LDS_B}")

def xio_setup(k, buf_const, lstride):
    lin(k, 44, buf_const, [(S_L, lstride), (S_MT, 20480)])
    k.e(f"s_and_b32 s46, s{S_CG8}, 1")
    k.e(f"s_mul_i32 s47, s{S_CG8}, 5\ns_lshr_b32 s47, s47, 1")
    k.e(f"s_lshl_b32 s47, s47, 10\ns_add_u32 s44, s44, s47")
    k.e(f"s_cmp_eq_u32 s46, 1")
    k.sel(47, 512, 2048)
    k.e(f"s_add_u32 s45, s44, s47")
    k.e(f"s_cmp_eq_u32 s46, 1")
    k.e(f"s_cselect_b32 s47, 1024, 0\ns_add_u32 s44, s44, s47")

def red_finish(k, T, fill=None):
    k.e(f"v_add_u32 v10, s43, v5")
    for j in range(3):
        for t in range(5):
            r = T + (j * 5 + t) * 4
            k.ds(f"ds_read_b128 {v4(r)}, v10 offset:{(j*5+t)*1024}", f"rr{j}")
    own = ACCK + 15 * 4
    U = T + 60
    for q in range(10):
        k.e(f"v_lshlrev_b32 v{U+2*q}, 16, v{RES+q}\nv_and_b32 v{U+2*q+1}, 0xffff0000, v{RES+q}")
    for q in range(10):
        k.e(f"v_pk_add_f32 {vp(own+2*q)}, {vp(own+2*q)}, {vp(U+2*q)}")
    if fill:
        fill.pop(4)
    for j in range(3):
        k.wait_ds(f"rr{j}")
        for q in range(10):
            k.e(f"v_pk_add_f32 {vp(own+2*q)}, {vp(own+2*q)}, {vp(T+j*20+2*q)}")
    for q in range(10):
        k.e(f"v_cvt_pk_bf16_f32 v{RES+q}, v{own+2*q}, v{own+2*q+1}")

def x_store(k, st_const, st_lstride):
    P = RES
    k.vm(f"buffer_store_dwordx4 {v4(P)}, v5, {R_}, s44 offen{STF}", "st")
    k.vm(f"buffer_store_dwordx4 {v4(P+4)}, v5, {R_}, s44 offen offset:1024{STF}", "st")
    k.vm(f"buffer_store_dwordx2 {vp(P+8)}, v6, {R_}, s45 offen{STF}", "st")
    k.e("s_mov_b32 s46, 0x3f803f80")
    k.e("v_mov_b32 v10, 0\nv_mov_b32 v11, 0\nv_mov_b32 v12, 0\nv_mov_b32 v13, 0")
    for q in range(10):
        k.e(f"v_dot2_f32_bf16 v{10+2*(q&1)}, v{P+q}, s46, v{10+2*(q&1)}")
        k.e(f"v_dot2_f32_bf16 v{11+2*(q&1)}, v{P+q}, v{P+q}, v{11+2*(q&1)}")
    k.e(f"v_lshlrev_b32 v14, 3, v4\nv_mov_b32 v15, 0x{OOB:x}")
    k.e("v_cmp_eq_u32 vcc, 0, v3\nv_cndmask_b32 v14, v15, v14, vcc")
    lin(k, 46, st_const, [(S_L, st_lstride), (S_MT, 1024), (S_CG8, 128)])
    k.e("v_pk_add_f32 v[10:11], v[10:11], v[12:13]")
    for sw in ("v_permlane16_swap_b32", "v_permlane32_swap_b32"):
        k.e("v_mov_b32 v12, v10\nv_mov_b32 v13, v11")
        k.e(f"{sw} v10, v12\n{sw} v11, v13")
        k.e("v_pk_add_f32 v[10:11], v[10:11], v[12:13]")
    k.vm(f"buffer_store_dwordx2 v[10:11], v14, {R_}, s46 offen{STF}", "st")

def short_mt(k, ml, dst):
    k.e(f"s_add_u32 s{dst}, s{S_W}, {1+ml}\ns_and_b32 s{dst}, s{dst}, 3\ns_lshl_b32 s8, s{S_RB64}, 2\ns_add_u32 s{dst}, s{dst}, s8")

def p2(k):
    for ml in range(4):
        short_mt(k, ml, 30)
        lin(k, 31, WS["O"][0], [(S_L, XS), (30, 20480), (S_W, 5120)])
        for kk in range(5):
            r = (ml * 5 + kk) * 4
            if kk < 4:
                k.vm(f"buffer_load_dwordx4 {a4(r)}, v5, {R_}, s31 offen offset:{kk*1024}{LDF}", f"o{ml}_{kk}")
            else:
                k.vm(f"buffer_load_dwordx4 {a4(r)}, v9, {R_}, s31 offen{LDF}", f"o{ml}_{kk}")
    red_setup(k)
    xio_setup(k, WS["X"][0] + XS, 2 * XS)
    for ml in range(4):
        for kk in range(5):
            k.wait_vm(f"o{ml}_{kk}")
            if ml == 0 and kk == 0:
                pstamp(k, 8)
            r = (ml * 5 + kk) * 4
            for t in range(5):
                a_ = ACCK + (ml * 5 + t) * 4
                cc = "0" if kk == 0 else v4(a_)
                k.e(f"{MF} {v4(a_)}, {wo_reg(kk*5+t)}, {a4(r)}, {cc}")
        if ml >= 1:
            red_write(k, ml - 1)
    wdf = Fill(wd_loads(k, 0, 24))
    wdf.pop(8)
    k.ds_drain()
    k.e("s_barrier")
    pstamp(k, 9)
    red_finish(k, 112, wdf)
    x_store(k, WS["ST"][0] + STS, 2 * STS)
    wdf.flush()
    pstamp(k, 10)
    cluster_sync(k, lambda: wgu34_three(k), 1)
    pstamp(k, 11)

def p3(k):
    BB = 32; ACC = 88; ST = 200
    def acc(m, t): return ACC + (m * 14 + t) * 4
    def bbuf(u, t): return BB + (u & 1) * 28 + t * 4
    def rdB(u, t):
        ks, hf = u // 2, u % 2
        off = ((ks // 2) % NSLOT) * CH + (ks % 2) * 14336 + hf * 7168 + t * 1024
        b, o = lds_addr(off)
        k.ds(f"ds_read_b128 {v4(bbuf(u, t))}, v{b} offset:{o}", f"b{u}")
    PD = CFG["PDX3"]
    xl = x_loader(k, WS["X"][0] + XS)
    for ks in range(PD):
        for f in xl(ks):
            f()
    def small_loads():
        lin(k, 26, WS["ST"][0] + STS, [(S_L, 2 * STS), (S_MT0, 1024)])
        stats_load(k, ST, 26, 10, "small")
        lin(k, 27, WS["CSG"][0], [(S_CG, 432)])
        k.e(f"s_mov_b32 m0, {CSL}")
        k.vm(f"buffer_load_dwordx4 v5, {R_}, s27 offen lds", "small")
        k.e(f"s_add_u32 s27, s27, {WS['CSU'][0] - WS['CSG'][0]}\ns_mov_b32 m0, {CSL + 1024}")
        k.vm(f"buffer_load_dwordx4 v5, {R_}, s27 offen lds", "small")
    NU = 40
    sched = {u: [] for u in range(NU)}
    for ks in range(PD, 20):
        L = xl(ks)
        sched[2 * (ks - PD)].append(L[0])
        sched[2 * (ks - PD) + 1].append(L[1])
    sched[1].append(small_loads)
    for (cs_, u0) in (((5, 6), 8), ((7, 8), 16), ((9,), 24)):
        L = []
        for c in cs_:
            L += wgu_chunk(k, c)
        for i, f in enumerate(L):
            sched[u0 + (i * 4) // len(L)].append(f)
    wv = wd_loads(k, 24, 36)
    for i, f in enumerate(wv):
        sched[2 + (i // 2) if i < 12 else 0].append(f)
    wa = wd_loads(k, 36, 70)
    slots = [u for u in list(range(12, 16)) + list(range(20, 24)) + list(range(28, 40))]
    pos = 0
    for j, f in enumerate(wa):
        umin = 2 * (j >> 1) + 2
        uu = max(umin, 8 + j - (j // 6), pos)
        uu = min(uu, 39)
        sched[uu].append(f); pos = uu
    r2 = Rec()
    AT, BT = 12, 14
    for m in range(2):
        stats_to_ab(r2, ST + 4 * m, AT + m, BT + m)
    r2.e(f"s_mov_b32 s72, 0x{LOG2E ^ 0x80000000:x}\ns_mov_b32 s73, 0x{LOG2E ^ 0x80000000:x}\ns_mov_b32 s70, 1.0\ns_mov_b32 s71, 1.0")
    r2.e("v_cmp_gt_u32 s[64:65], 3, v3")
    r2.e(f"s_lshr_b32 s30, s{S_CG}, 1\ns_and_b32 s31, s{S_CG}, 1")
    lin(r2, 32, WS["H"][0], [(S_L, HS), (S_MT0, 56 * 1024), (30, 7 * 1024)], tmp=34)
    r2.e(f"s_lshl_b32 s33, s31, 9\ns_add_u32 s33, s33, {6*1024}\ns_add_u32 s33, s33, s32")
    r2.e(f"s_mul_i32 s34, s31, {3*1024}\ns_add_u32 s32, s32, s34")
    vf = Fill(r2.groups(k))
    for u in range(NU):
        ks, hf = u // 2, u % 2
        c = ks // 2
        if hf == 0:
            k.wait_vm(f"x{ks}")
        if u == 0:
            k.e("s_barrier")
            pstamp(k, 12)
            for t in range(7):
                rdB(0, t)
        if u in (7, 15, 23, 31):
            if u >= 15:
                k.wait_vm({15: "c6", 23: "c8", 31: "c9"}[u])
            k.e("s_barrier")
        if u == 30:
            k.wait_vm("small")
        fill = Fill(sched[u])
        k.wait_ds(f"b{u}")
        n = 0
        for t in range(7):
            tt = hf * 7 + t
            r = bbuf(u, t)
            for m in range(2):
                cc = "0" if ks == 0 else v4(acc(m, tt))
                k.e(f"{MF} {v4(acc(m,tt))}, {v4(r)}, {a4(xa(ks,m))}, {cc}")
                if n < 7 and u + 1 < NU:
                    rdB(u + 1, n)
                elif n >= 7:
                    if fill.q:
                        fill.pop()
                    elif u >= 30:
                        vf.pop(2)
                n += 1
        fill.flush()
    vf.flush()
    pstamp(k, 13)
    CS = BB
    k.e("s_barrier")
    k.e(f"v_lshlrev_b32 v10, 4, v3\nv_add_u32 v10, {CSL}, v10")
    for t in range(7):
        k.ds(f"ds_read_b128 {v4(CS+4*t)}, v10 offset:{64*t}", f"cs{t}")
        k.ds(f"ds_read_b128 {v4(CS+28+4*t)}, v10 offset:{1024+64*t}", f"cs{t}")
    wq = Fill(wq_dma(k, 0))
    wq.pop(4)
    T0 = ST
    def tiles(m, ts):
        for t in ts:
            k.wait_ds(f"cs{t}")
            if t == 6 and m == 0:
                for r in range(4):
                    k.e(f"v_cndmask_b32 v{CS+24+r}, 0, v{CS+24+r}, s[64:65]\nv_cndmask_b32 v{CS+52+r}, 0, v{CS+52+r}, s[64:65]")
        Q = [(t, h, T0 + 4 * i + h) for i, t in enumerate(ts) for h in (0, 2)]
        for (t, h, tm) in Q:
            k.e(f"v_pk_mul_f32 {vp(tm)}, {vp(CS+4*t+h)}, {vp(BT)} {bc(1, 2, m)}")
        for (t, h, tm) in Q:
            x = acc(m, t) + h
            k.e(f"v_pk_fma_f32 {vp(x)}, {vp(x)}, {vp(AT)}, {vp(tm)} {bc(1, 3, m)}")
        for (t, h, tm) in Q:
            k.e(f"v_pk_mul_f32 {vp(tm)}, {vp(CS+28+4*t+h)}, {vp(BT)} {bc(1, 2, m)}")
        for (t, h, tm) in Q:
            x = acc(m, 7 + t) + h
            k.e(f"v_pk_fma_f32 {vp(x)}, {vp(x)}, {vp(AT)}, {vp(tm)} {bc(1, 3, m)}")
        for (t, h, tm) in Q:
            k.e(f"v_pk_mul_f32 {vp(tm)}, {vp(acc(m,t)+h)}, s[72:73]")
        for (t, h, tm) in Q:
            k.e(f"v_exp_f32 v{tm}, v{tm}\nv_exp_f32 v{tm+1}, v{tm+1}")
        wq.pop(1)
        for (t, h, tm) in Q:
            x = acc(m, t) + h
            k.e(f"v_pk_mul_f32 {vp(x)}, {vp(x)}, {vp(acc(m,7+t)+h)}")
        for (t, h, tm) in Q:
            k.e(f"v_pk_add_f32 {vp(tm)}, {vp(tm)}, s[70:71]")
        for (t, h, tm) in Q:
            k.e(f"v_rcp_f32 v{tm}, v{tm}\nv_rcp_f32 v{tm+1}, v{tm+1}")
        wq.pop(2)
        for (t, h, tm) in Q:
            x = acc(m, t) + h
            k.e(f"v_pk_mul_f32 {vp(x)}, {vp(x)}, {vp(tm)}")
        P = acc(m, 7 + ts[0])
        for i, t in enumerate(ts):
            x = acc(m, t)
            k.e(f"v_cvt_pk_bf16_f32 v{P+2*i}, v{x}, v{x+1}")
            k.e(f"v_cvt_pk_bf16_f32 v{P+2*i+1}, v{x+2}, v{x+3}")
        if len(ts) == 2:
            k.vm(f"buffer_store_dwordx4 {v4(P)}, v5, {R_}, s32 offen offset:{(ts[0]//2)*1024}{STF}", "st")
        else:
            k.vm(f"buffer_store_dwordx2 {vp(P)}, v6, {R_}, s33 offen{STF}", "st")
    for m in range(2):
        for ts in ((0, 1), (2, 3), (4, 5), (6,)):
            tiles(m, ts)
        if m == 0:
            k.e(f"s_add_u32 s32, s32, {56*1024}\ns_add_u32 s33, s33, {56*1024}")
    wq.flush()
    pstamp(k, 14)
    cluster_sync(k, None, 2)
    pstamp(k, 15)

def p4(k):
    PD = CFG["PDH"]
    NB = PD + 1
    HB = 112
    assert HB + 16 * NB <= 208
    def hb(ks, ml): return HB + (ks % NB) * 16 + ml * 4
    for ml in range(4):
        short_mt(k, ml, 30)
        lin(k, 36 + ml, WS["H"][0], [(S_L, HS), (30, 56 * 1024), (S_W, 14 * 1024)])
    def stage(ks):
        L = []
        for ml in range(4):
            def f(ml=ml):
                b = hb(ks, ml)
                if ks % 4 == 0 and ks:
                    k.e(f"s_add_u32 s{36+ml}, s{36+ml}, 4096")
                lo = (ks % 4) * 1024
                if ks % 7 != 6:
                    k.vm(f"buffer_load_dwordx4 {v4(b)}, v5, {R_}, s{36+ml} offen offset:{lo}{LDF}", f"h{ks}")
                else:
                    k.vm(f"buffer_load_dwordx2 {vp(b)}, v6, {R_}, s{36+ml} offen offset:{lo}{LDF}", f"h{ks}")
                    k.vm(f"buffer_load_dwordx2 {vp(b+2)}, v6, {R_}, s{36+ml} offen offset:{lo+512}{LDF}", f"h{ks}")
            L.append(f)
        return L
    for ks in range(PD):
        for f in stage(ks):
            f()
    red_setup(k)
    xio_setup(k, WS["X"][0] + 2 * XS, 2 * XS)
    for ks in range(14):
        fill = Fill(stage(ks + PD) if ks + PD < 14 else [])
        k.wait_vm(f"h{ks}")
        if ks == 0:
            pstamp(k, 16)
        i = 0
        for ml in range(4):
            for t in range(5):
                a_ = ACCK + (ml * 5 + t) * 4
                cc = "0" if ks == 0 else v4(a_)
                k.e(f"{MF} {v4(a_)}, {wd_reg(ks*5+t)}, {v4(hb(ks, ml))}, {cc}")
                i += 1
                if i % 4 == 2:
                    fill.pop()
            if ks == 13 and ml >= 1:
                red_write(k, ml - 1)
        fill.flush()
    pstamp(k, 17)
    wof = Fill(wo_loads(k, SRDQ))
    wof.pop(8)
    k.ds_drain()
    k.e("s_barrier")
    red_finish(k, 112, wof)
    k.e(f"s_cmp_eq_u32 s{S_L}, 1\ns_cbranch_scc1 FINAL")
    wof.pop(4)
    x_store(k, WS["ST"][0] + 2 * STS, 2 * STS)
    wof.flush()
    pstamp(k, 18)
    def dma():
        for f in wq_dma(k, 1, three=True):
            f()
    cluster_sync(k, dma, 3)
    pstamp(k, 19)

def final_store(k):
    P = RES
    k.e("v_mul_u32_u24 v10, 1280, v4\nv_lshl_add_u32 v10, v3, 3, v10")
    lin(k, 46, 0, [(S_MT, 20480), (S_CG8, 160)])
    k.e(f"s_and_b32 s47, s{S_CG8}, 1")
    for t in range(5):
        k.e(f"s_cmp_eq_u32 s47, 1")
        k.sel(48, 32 * ((t + 1) % 5), 32 * t)
        k.e("s_add_u32 s48, s48, s46")
        k.vm(f"buffer_store_dwordx2 v[{P+2*t}:{P+2*t+1}], v10, s[{SRDO}:{SRDO+3}], s48 offen", "st")

def build_main():
    k = K(NAME)
    k.e("s_cmp_ge_u32 s2, 256")
    k.e("s_cbranch_scc1 MAIN_END")
    k.ldarg(10, "ws")
    k.ldarg(36, "out")
    k.e("s_and_b32 s24, s2, 7\ns_lshr_b32 s25, s2, 3")
    if CFG["XL"]:
        k.e(f"s_lshl_b32 s{S_RB}, s24, 1\ns_lshr_b32 s27, s25, 4\ns_add_u32 s{S_RB}, s{S_RB}, s27")
        k.e(f"s_and_b32 s{S_CG}, s25, 15")
        k.e(f"s_lshl_b32 s{S_RB64}, s{S_RB}, 1\ns_lshr_b32 s27, s{S_CG}, 3\ns_add_u32 s{S_RB64}, s{S_RB64}, s27")
        k.e(f"s_and_b32 s{S_CG8}, s{S_CG}, 7")
    else:
        k.e("s_lshr_b32 s26, s24, 1\ns_and_b32 s24, s24, 1")
        k.e(f"s_lshl_b32 s{S_RB}, s26, 2\ns_lshr_b32 s27, s25, 3\ns_add_u32 s{S_RB}, s{S_RB}, s27")
        k.e(f"s_lshl_b32 s{S_CG}, s24, 3\ns_and_b32 s27, s25, 7\ns_add_u32 s{S_CG}, s{S_CG}, s27")
        k.e(f"s_lshl_b32 s{S_RB64}, s26, 3\ns_lshr_b32 s27, s25, 2\ns_add_u32 s{S_RB64}, s{S_RB64}, s27")
        k.e(f"s_lshl_b32 s{S_CG8}, s24, 2\ns_and_b32 s27, s25, 3\ns_add_u32 s{S_CG8}, s{S_CG8}, s27")
    k.e("v_lshrrev_b32 v1, 6, v0")
    k.e("v_and_b32 v2, 63, v0")
    k.e(f"v_readfirstlane_b32 s{S_W}, v1")
    k.e("v_lshrrev_b32 v3, 4, v2")
    k.e("v_and_b32 v4, 15, v2")
    k.e("v_lshlrev_b32 v5, 4, v2")
    k.e("v_lshlrev_b32 v6, 3, v2")
    k.e("v_add_u32 v7, 0x10000, v5\nv_add_u32 v8, 0x20000, v5\nv_add_u32 v9, 4096, v5")
    if PROF:
        k.e("v_mov_b32 v31, 0\nv_mov_b32 v30, 0")
    k.e(f"s_lshl_b32 s{S_MT0}, s{S_RB}, 3\ns_lshl_b32 s27, s{S_W}, 1\ns_add_u32 s{S_MT0}, s{S_MT0}, s27")
    k.e(f"s_lshl_b32 s{S_MT}, s{S_RB64}, 2\ns_add_u32 s{S_MT}, s{S_MT}, s{S_W}")
    k.e(f"s_mov_b32 s{S_L}, 0\ns_mov_b32 s{S_CLT}, 0\ns_mov_b32 s{S_COLT}, 0")
    k.e(f"s_mul_i32 s{S_W7}, s{S_W}, 7168")
    lin(k, S_WGU, WS["WGU"][0], [(S_CG, 20 * 14 * 1024), (S_W7, 1)])
    lin(k, S_CLO, CL_OFF, [(S_RB, 128)])
    lin(k, S_COLO, COL_OFF, [(S_CG, 128)])
    k.e("s_waitcnt lgkmcnt(0)")
    k.srd(SRD, 10, WS_END)
    k.srd(SRDO, 36, S * D * 2)
    k.srd(SRDQ, 10, WS_END)
    pstamp(k, 0)
    lin(k, S_WD, WS["WD"][0], [(S_CG8, 56 * 5120), (S_W, 70 * 1024)])
    lin(k, S_WO, WS["WO"][0], [(S_CG8, 102400), (S_W, 25600)])
    for f in wq_dma(k, 0) + wq_dma(k, 1) + wo_loads(k, SRD):
        f()
    xio_setup(k, WS["X"][0], 2 * XS)
    k.vm(f"buffer_load_dwordx4 v[{RES}:{RES+3}], v5, {R_}, s44 offen", "res")
    k.vm(f"buffer_load_dwordx4 v[{RES+4}:{RES+7}], v5, {R_}, s44 offen offset:1024", "res")
    k.vm(f"buffer_load_dwordx2 v[{RES+8}:{RES+9}], v6, {R_}, s45 offen", "res")
    k.label("LOOP")
    k.vmq = []; k.dsq = []; k.ds_done = -1
    k.e(f"s_cmp_eq_u32 s{S_L}, 1\ns_cselect_b32 s{SRDQ+2}, 0, s{SRD+2}")
    p1(k)
    p2(k)
    p3(k)
    p4(k)
    if PROF:
        k.e("v_mov_b32 v30, v31")
    k.e(f"s_add_u32 s{S_L}, s{S_L}, 1")
    k.e("s_branch LOOP")
    k.label("FINAL")
    final_store(k)
    pstamp(k, 18)
    if PROF:
        k.e("s_memrealtime s[98:99]\ns_waitcnt lgkmcnt(0)\nv_writelane_b32 v31, s98, 63")
        lin(k, 46, WS["PROF"][0], [(2, 4 * 512), (S_W, 512)])
        k.e("v_lshlrev_b32 v10, 2, v2")
        k.e(f"buffer_store_dword v30, v10, {R_}, s46 offen\nbuffer_store_dword v31, v10, {R_}, s46 offen offset:256")
    k.e("s_waitcnt vmcnt(0)")
    k.label("MAIN_END")
    k.e("s_endpgm")
    return (k, 256, 256, 256, 163840, 256)
```

```python
import sys, os
sys.path.insert(0, os.path.dirname(__file__))
from common import *
from asmlib import kernel_text

HEADER = open("interleave_layers__linear_attn_block__swiglu_ffn__prompt.s.ref").read().split("; @launch")[0]

def assemble(kernels, path):
    head = HEADER
    texts, rods = [], []
    seen = set()
    for (k, vg, ag, grid, lds, blk) in kernels:
        head += f"; @launch kernel={k.name} grid=({grid},1,1) block=({blk},1,1) lds={lds}\n"
        if k.name in seen:
            continue
        seen.add(k.name)
        t, r = kernel_text(k, vg, ag)
        texts.append(t); rods.append(r)
    s = head + '.amdgcn_target "amdgcn-amd-amdhsa--gfx950"\n.text\n' + "\n".join(texts) + '.section .rodata,"a"\n.p2align 6\n' + ".p2align 6\n".join(rods)
    open(path, "w").write(s)
    return len(s)

if __name__ == "__main__":
    from k0 import build_k0
    ks = []
    k, vg, ag, grid, lds = build_k0()
    ks.append((k, vg, ag, grid, lds, 256))
    import pk
    ks.append(pk.build_main())
    out = sys.argv[1] if len(sys.argv) > 1 else "cur.s"
    n = assemble(ks, out)
    print("wrote", out, n, "bytes")
```

```python
from asmlib import Kern, kernel_text

S, D, H, DH, F = 2048, 640, 32, 20, 1728
KB = 1024

def _al(x, a=4096):
    return (x + a - 1) // a * a
WS = {}
_off = 0
def _alloc(name, size):
    global _off
    WS[name] = (_off, size)
    _off = _al(_off + size)
_alloc("WQ", 16 * 20 * 8 * KB)
_alloc("WO", 8 * 20 * 5 * KB)
_alloc("WGU", 16 * 20 * 14 * KB)
_alloc("WD", 8 * 56 * 5 * KB)
_alloc("CSQ", 1920 * 4)
_alloc("CSG", 1728 * 4)
_alloc("CSU", 1728 * 4)
XS = 128 * 20 * KB
STS = 128 * KB
HS = 128 * 56 * KB
KVB = 3584
KVL = 16 * KVB
_alloc("X", 4 * XS)
_alloc("ST", 4 * STS)
_alloc("O", 2 * XS)
SYNC_IN_KVZ = 2 * KVL
_alloc("KVZ", 9 * 4 * 4096)
_alloc("H", 2 * HS)
for i in range(4):
    WS[f"X{i}"] = (WS["X"][0] + i * XS, XS)
    WS[f"ST{i}"] = (WS["ST"][0] + i * STS, STS)
for i in range(2):
    WS[f"O{i}"] = (WS["O"][0] + i * XS, XS)
    WS[f"H{i}"] = (WS["H"][0] + i * HS, HS)
WS["KV"] = (WS["KVZ"][0], 2 * KVL)
SYNC_OFF = WS["KVZ"][0] + SYNC_IN_KVZ
FST = 256
FC_OFF = SYNC_OFF
FL_OFF = FC_OFF + 16 * FST
assert SYNC_IN_KVZ + 32 * FST <= WS["KVZ"][1]
_alloc("PROF", 256 * 4 * 2 * 256)
WS_END = _off

ARG = dict(x=0, wqkv=8, wo=16, bx=24, wg=32, wu=40, wd=48, out=56, dbg=64, ws=72)
OOB = 0x40000000

class K(Kern):
    def __init__(self, name):
        super().__init__(name)
        self.vmq = []
        self.dsq = []
        self.ds_done = -1
    def vm(self, text, tag=None):
        self.e(text)
        self.vmq.append(tag)
    def vm_after(self, tag):
        idx = max(i for i, t in enumerate(self.vmq) if t == tag)
        return len(self.vmq) - 1 - idx
    def wait_vm(self, tag, extra=""):
        n = min(self.vm_after(tag), 63)
        key = ("vm", n)
        self.e(f"s_waitcnt vmcnt({n}) {extra}".strip())
    def ds(self, text, tag=None):
        self.e(text)
        self.dsq.append(tag)
    def wait_ds(self, tag):
        idx = max(i for i, t in enumerate(self.dsq) if t == tag)
        n = min(len(self.dsq) - 1 - idx, 15)
        if idx <= self.ds_done:
            return
        self.e(f"s_waitcnt lgkmcnt({n})")
        self.ds_done = len(self.dsq) - 1 - n
    def ds_drain(self):
        self.e("s_waitcnt lgkmcnt(0)")
        self.ds_done = len(self.dsq) - 1
    def srd_l(self, d, off, size, stride=0, tmp=73):
        if stride:
            self.e(f"s_mul_i32 s{tmp}, s9, 0x{stride:x}")
            self.e(f"s_add_u32 s{tmp}, s{tmp}, 0x{off:x}")
            self.e(f"s_add_u32 s{d}, s10, s{tmp}")
        else:
            self.e(f"s_add_u32 s{d}, s10, 0x{off:x}")
        self.e(f"s_addc_u32 s{d+1}, s11, 0")
        self.e(f"s_mov_b32 s{d+2}, 0x{size:x}")
        self.e(f"s_mov_b32 s{d+3}, 0x00020000")
    def srd_add(self, d, sreg):
        self.e(f"s_add_u32 s{d}, s{d}, s{sreg}")
        self.e(f"s_addc_u32 s{d+1}, s{d+1}, 0")
    def srd(self, d, blo, size, off=0):
        if off:
            self.e(f"s_add_u32 s{d}, s{blo}, 0x{off:x}")
            self.e(f"s_addc_u32 s{d+1}, s{blo+1}, 0")
        else:
            self.e(f"s_mov_b32 s{d}, s{blo}")
            self.e(f"s_mov_b32 s{d+1}, s{blo+1}")
        self.e(f"s_mov_b32 s{d+2}, 0x{size:x}")
        self.e(f"s_mov_b32 s{d+3}, 0x00020000")
    def sel(self, d, a, b):
        self.e(f"s_mov_b32 s{d}, {b}")
        self.e(f"s_cselect_b32 s{d}, {a}, s{d}")
    def ldarg(self, d, name):
        self.e(f"s_load_dwordx2 s[{d}:{d+1}], s[0:1], {ARG[name]}")

def vr(b, n=1, p="v"):
    return f"{p}{b}" if n == 1 else f"{p}[{b}:{b+n-1}]"
def ar(b, n=1):
    return vr(b, n, "a")
def sr(b, n=1):
    return vr(b, n, "s")

import os
PROF = bool(int(os.environ.get("PROF", "0")))
def stamp(k, i, real=False):
    if not PROF:
        return
    k.e(f"{'s_memrealtime' if real else 's_memtime'} s[{80+2*i}:{81+2*i}]")
    k.e("s_waitcnt lgkmcnt(0)")
def stamp_flush(k, kidx, n, ws_pair):
    if not PROF:
        return
    k.e("s_waitcnt vmcnt(0)")
    stamp(k, n)
    stamp(k, n + 1, real=True)
    k.srd(76, ws_pair, WS["PROF"][1], WS["PROF"][0])
    k.e(f"s_lshl_b32 s74, s2, 2\ns_add_u32 s74, s74, s3\ns_add_u32 s74, s74, {kidx*2048}\ns_lshl_b32 s74, s74, 6")
    k.e("s_mov_b64 exec, 1")
    k.e("v_mov_b32 v1, 0")
    for i in range(n + 2):
        k.e(f"v_mov_b32 v2, s{80+2*i}")
        k.e(f"buffer_store_dword v2, v1, s[76:79], s74 offen offset:{4*i}")
```

```python
from common import *

B_J6A = 0
B_J6B = B_J6A + 30
B_J5 = B_J6B + 54
B_J7 = B_J5 + 128
B_J1 = B_J7 + 9
B_J2 = B_J1 + 80
B_J3 = B_J2 + 160
B_J4 = B_J3 + 40
K0_GRID = B_J4 + 112
SC = os.environ.get("K0SC", "")
if SC: SC = " " + SC
LDM = os.environ.get("K0LD", "")
if LDM: LDM = " " + LDM
WLDS = 9216

def pack(k, ppr, nq, stride, col, generic=False):
    M = -(-65536 // ppr)
    k.e(f"s_mov_b32 s45, {stride}")
    for q in range(nq):
        k.e(f"v_add_u32 v6, {64*q}, v2")
        k.e(f"v_mul_u32_u24 v7, {M}, v6\nv_lshrrev_b32 v7, 16, v7")
        k.e(f"v_mul_u32_u24 v8, {ppr}, v7\nv_sub_u32 v8, v6, v8")
        a = 16 + q
        col(8, 9)
        if generic:
            k.e("v_lshrrev_b32 v10, 4, v7\nv_mul_u32_u24 v10, s27, v10")
            k.e("v_bfe_u32 v11, v7, 2, 2\nv_mad_u32_u24 v10, v11, s36, v10")
            k.e("v_and_b32 v7, 3, v7\nv_add_u32 v7, v7, v10")
            k.e(f"v_mad_u32_u24 v{a}, v7, s45, v9")
            k.e(f"v_cmp_gt_u32 vcc, s37, v11\nv_cndmask_b32 v{a}, v15, v{a}, vcc")
        else:
            k.e(f"v_mad_u32_u24 v{a}, v7, s45, v9")
        k.e(f"s_add_u32 m0, s46, {1024*q}")
        k.vm(f"buffer_load_dwordx4 v{a}, s[8:11], s47 offen{LDM} lds", "ld")
    k.e(f"v_lshrrev_b32 v6, 2, v2\nv_mul_u32_u24 v6, {16*ppr}, v6\nv_and_b32 v7, 3, v2\nv_lshl_add_u32 v6, v7, 3, v6\nv_add_u32 v6, s46, v6")

def unpack(k, ppr, ntiles, areg, toff):
    k.e("s_waitcnt vmcnt(0)")
    for t in range(ntiles):
        for h in range(2):
            k.ds(f"ds_read_b64_tr_b16 v[{32+4*t+2*h}:{33+4*t+2*h}], v{areg(t)} offset:{h*16*16*ppr + toff(t)}", f"t{t}")

def stores(k, ntiles, split, mask=None):
    for t in range(ntiles):
        k.wait_ds(f"t{t}")
        if mask:
            mask(t)
        if t >= split:
            so, lo = "s44", (t - split) * 1024
        else:
            so, lo = "s24", t * 1024
        k.vm(f"buffer_store_dwordx4 v[{32+4*t}:{35+4*t}], v5, s[12:15], {so} offen offset:{lo}{SC}", "st")

def build_k0():
    k = K("k0_kernel")
    k.e(f"s_cmp_ge_u32 s2, {K0_GRID}")
    k.e("s_cbranch_scc1 K0_END")
    k.ldarg(4, "ws")
    k.e("v_lshrrev_b32 v1, 6, v0")
    k.e("v_and_b32 v2, 63, v0")
    k.e("v_readfirstlane_b32 s3, v1")
    k.e("v_lshrrev_b32 v3, 4, v2")
    k.e("v_and_b32 v4, 15, v2")
    k.e("v_lshlrev_b32 v5, 4, v2")
    k.e(f"v_mov_b32 v15, 0x{OOB:x}")
    k.e(f"s_mul_i32 s46, s3, {WLDS}")
    emit_jobs(k, "s2")
    k.label("K0_END")
    k.e("s_endpgm")
    return k, 128, 0, K0_GRID, 4 * WLDS

def emit_jobs(k, J):
    only = os.environ.get("K0ONLY")
    if only:
        lo, hi = [int(x) for x in only.split(",")]
        k.e(f"s_cmp_lt_u32 {J}, {lo}\ns_cbranch_scc1 K0_END\ns_cmp_ge_u32 {J}, {hi}\ns_cbranch_scc1 K0_END")
    k.e(f"s_cmp_ge_u32 {J}, {B_J3}\ns_cbranch_scc1 K0_J34")
    k.e(f"s_cmp_ge_u32 {J}, {B_J2}\ns_cbranch_scc1 K0_J2")
    k.e(f"s_cmp_ge_u32 {J}, {B_J1}\ns_cbranch_scc1 K0_J1")
    k.e(f"s_cmp_ge_u32 {J}, {B_J7}\ns_cbranch_scc1 K0_J7")
    k.e(f"s_cmp_ge_u32 {J}, {B_J5}\ns_cbranch_scc1 K0_J5")
    k.e("s_branch K0_J6")

    k.label("K0_J1")
    k.vmq = []; k.dsq = []; k.ds_done = -1
    k.ldarg(6, "wqkv")
    k.e(f"s_sub_u32 s29, {J}, {B_J1}")
    k.e("s_and_b32 s30, s29, 3\ns_lshr_b32 s29, s29, 2")
    k.e("s_lshl_b32 s30, s30, 2\ns_add_u32 s30, s30, s3")
    k.e(f"s_mul_i32 s47, s29, {32*3840}")
    k.e("s_mul_i32 s31, s30, 80")
    k.e("s_mul_i32 s24, s30, 163840\ns_mul_i32 s44, s29, 3072\ns_add_u32 s44, s44, s24\ns_add_u32 s44, s44, 102400")
    k.e("s_mul_i32 s25, s29, 5120\ns_add_u32 s24, s24, s25")
    k.e("s_mov_b32 s32, 2480\ns_mov_b32 s33, -160")
    k.e("s_waitcnt lgkmcnt(0)")
    k.srd(8, 6, 640 * 1920 * 2)
    k.srd(12, 4, WS["WQ"][1], WS["WQ"][0])
    def col1(p, o):
        k.e(f"v_mov_b32 v12, s33\nv_mov_b32 v13, s32")
        k.e(f"v_cmp_gt_u32 vcc, 10, v{p}\nv_cndmask_b32 v12, v12, v13, vcc")
        k.e(f"v_mov_b32 v13, 1280\nv_cmp_gt_u32 vcc, 5, v{p}\nv_cndmask_b32 v12, v12, v13, vcc")
        k.e(f"v_lshl_add_u32 v{o}, v{p}, 4, v12\nv_add_u32 v{o}, s31, v{o}")
        k.e(f"v_cmp_gt_u32 vcc, 15, v{p}\nv_cndmask_b32 v{o}, v15, v{o}, vcc")
    pack(k, 18, 9, 3840, col1)
    k.e("s_add_u32 s25, s24, 4096")
    k.e("v_cmp_gt_u32 s[34:35], 8, v4")
    unpack(k, 18, 8, lambda t: 6, lambda t: 32 * t)
    for t in range(8):
        k.wait_ds(f"t{t}")
        if t == 7:
            for r in range(4):
                k.e(f"v_cndmask_b32 v{32+4*t+r}, 0, v{32+4*t+r}, s[34:35]")
        so, lo = ("s24", t * 1024) if t < 4 else (("s25", 0) if t == 4 else ("s44", (t - 5) * 1024))
        k.vm(f"buffer_store_dwordx4 v[{32+4*t}:{35+4*t}], v5, s[12:15], {so} offen offset:{lo}{SC}", "st")
    k.e("s_branch K0_END")

    k.label("K0_J2")
    k.vmq = []; k.dsq = []; k.ds_done = -1
    k.e(f"s_sub_u32 s29, {J}, {B_J2}")
    k.e("s_and_b32 s31, s29, 1")
    k.e("s_lshl_b32 s28, s31, 3")
    k.e("s_add_u32 s6, s0, s28\ns_addc_u32 s7, s1, 0")
    k.e(f"s_load_dwordx2 s[6:7], s[6:7], {ARG['wg']}")
    k.e("s_lshr_b32 s30, s29, 1\ns_and_b32 s30, s30, 3")
    k.e("s_lshl_b32 s30, s30, 2\ns_add_u32 s30, s30, s3")
    k.e("s_lshr_b32 s29, s29, 3")
    k.e(f"s_mul_i32 s47, s29, {32*3456}")
    k.e("s_mul_i32 s32, s30, 216")
    k.e("s_mul_i32 s24, s30, 280")
    k.e("s_mul_i32 s44, s29, 6\ns_mul_i32 s33, s31, 3\ns_add_u32 s44, s44, s33\ns_add_u32 s44, s44, s24\ns_add_u32 s44, s44, 160\ns_lshl_b32 s44, s44, 10")
    k.e("s_lshl_b32 s33, s29, 3\ns_add_u32 s24, s24, s33\ns_lshl_b32 s31, s31, 2\ns_add_u32 s24, s24, s31\ns_lshl_b32 s24, s24, 10")
    k.e("s_waitcnt lgkmcnt(0)")
    k.srd(8, 6, 640 * 1728 * 2)
    k.srd(12, 4, WS["WGU"][1], WS["WGU"][0])
    def col2(p, o):
        k.e(f"v_lshlrev_b32 v{o}, 4, v{p}\nv_min_u32 v{o}, 200, v{o}\nv_add_u32 v{o}, s32, v{o}")
    pack(k, 14, 7, 3456, col2)
    k.e("v_and_b32 v7, 3, v2\nv_cmp_eq_u32 vcc, 2, v7\nv_add_u32 v8, 8, v6\nv_cndmask_b32 v7, v6, v8, vcc")
    k.e("v_cmp_gt_u32 s[34:35], 12, v4")
    unpack(k, 14, 7, lambda t: 7 if t == 6 else 6, lambda t: 32 * t)
    def mask2(t):
        if t == 6:
            for r in range(4):
                k.e(f"v_cndmask_b32 v{32+4*t+r}, 0, v{32+4*t+r}, s[34:35]")
    stores(k, 7, 4, mask2)
    k.e("s_branch K0_END")

    k.label("K0_J34")
    k.vmq = []; k.dsq = []; k.ds_done = -1
    k.e(f"s_cmp_ge_u32 {J}, {B_J4}\ns_cbranch_scc1 K0_J4")
    k.ldarg(6, "wo")
    k.e(f"s_sub_u32 s29, {J}, {B_J3}")
    k.e("s_and_b32 s30, s29, 1\ns_lshl_b32 s30, s30, 2\ns_add_u32 s30, s30, s3")
    k.e("s_lshr_b32 s29, s29, 1")
    k.e("s_mul_i32 s31, s29, 52\ns_lshr_b32 s31, s31, 8")
    k.e("s_mul_i32 s32, s31, 5\ns_sub_u32 s32, s29, s32")
    k.e("s_mul_i32 s33, s31, 160")
    k.e("s_cmp_gt_u32 s32, 2\ns_cselect_b32 s34, 1, 0\ns_sub_u32 s34, s32, s34\ns_mul_i32 s34, s34, 40\ns_add_u32 s26, s33, s34")
    k.e("s_add_u32 s35, s33, 16")
    k.e("s_cmp_eq_u32 s32, 2")
    k.e("s_cselect_b32 s26, s35, s26\ns_mov_b32 s27, 20\ns_cselect_b32 s36, 40, 4")
    k.e("s_mov_b32 s37, 4")
    k.e("s_mul_i32 s24, s30, 20\ns_add_u32 s24, s24, s29\ns_mul_i32 s24, s24, 5120")
    k.e("s_waitcnt lgkmcnt(0)")
    k.srd(8, 6, 640 * 640 * 2)
    k.srd(12, 4, WS["WO"][1], WS["WO"][0])
    k.e("s_branch K0_J34C")
    k.label("K0_J4")
    k.ldarg(6, "wd")
    k.e(f"s_sub_u32 s29, {J}, {B_J4}")
    k.e("s_and_b32 s30, s29, 1\ns_lshl_b32 s30, s30, 2\ns_add_u32 s30, s30, s3")
    k.e("s_lshr_b32 s29, s29, 1")
    k.e("s_mul_i32 s31, s29, 37\ns_lshr_b32 s31, s31, 8")
    k.e("s_mul_i32 s32, s31, 7\ns_sub_u32 s32, s29, s32")
    k.e("s_mul_i32 s33, s31, 216")
    k.e("s_cmp_ge_u32 s32, 3\ns_cselect_b32 s34, 12, 0\ns_lshl_b32 s35, s32, 5\ns_add_u32 s26, s33, s35\ns_add_u32 s26, s26, s34")
    k.e("s_add_u32 s35, s33, 96")
    k.e("s_cmp_eq_u32 s32, 6")
    k.e("s_cselect_b32 s26, s35, s26\ns_cselect_b32 s27, 108, 16\ns_cselect_b32 s37, 3, 4")
    k.e("s_mov_b32 s36, 4")
    k.e("s_mul_i32 s24, s30, 56\ns_add_u32 s24, s24, s29\ns_mul_i32 s24, s24, 5120")
    k.e("s_waitcnt lgkmcnt(0)")
    k.srd(8, 6, 1728 * 640 * 2)
    k.srd(12, 4, WS["WD"][1], WS["WD"][0])
    k.label("K0_J34C")
    k.e("s_mul_i32 s47, s26, 1280")
    k.e("s_mul_i32 s38, s30, 160")
    def col3(p, o):
        k.e(f"v_lshlrev_b32 v{o}, 4, v{p}\nv_add_u32 v{o}, s38, v{o}")
    pack(k, 10, 5, 1280, col3, generic=True)
    k.e("s_and_b32 s39, s30, 1\ns_cmp_eq_u32 s39, 1")
    for t in range(5):
        k.sel(39, 32 * ((t + 1) % 5), 32 * t)
        k.e(f"v_add_u32 v{8+t}, s39, v6")
    k.e("s_add_u32 s44, s24, 4096")
    k.e("v_cmp_gt_u32 s[34:35], s37, v3")
    unpack(k, 10, 5, lambda t: 8 + t, lambda t: 0)
    def mask3(t):
        for r in range(4):
            k.e(f"v_cndmask_b32 v{32+4*t+r}, 0, v{32+4*t+r}, s[34:35]")
    stores(k, 5, 4, mask3)
    k.e("s_branch K0_END")

    k.label("K0_J5")
    k.vmq = []
    k.ldarg(6, "x")
    k.e(f"s_sub_u32 s29, {J}, {B_J5}")
    k.e("s_mul_i32 s30, s29, 20480")
    k.e("s_mul_i32 s31, s3, 320\ns_add_u32 s31, s31, s30")
    k.e("s_mul_i32 s32, s3, 5120\ns_add_u32 s32, s32, s30")
    k.e("s_add_u32 s34, s32, 4096")
    k.e("v_mul_u32_u24 v6, 1280, v4")
    k.e("v_lshl_add_u32 v6, v3, 3, v6")
    k.e("v_lshlrev_b32 v7, 3, v2")
    k.e("s_waitcnt lgkmcnt(0)")
    k.srd(8, 6, S * D * 2)
    k.srd(12, 4, WS["X"][1] // 4, WS["X"][0])
    k.srd(40, 4, WS["ST"][1] // 4, WS["ST"][0])
    L = 16
    for nt in range(10):
        k.vm(f"buffer_load_dwordx2 v[{L+2*nt}:{L+2*nt+1}], v6, s[8:11], s31 offen offset:{32*nt}", f"n{nt}")
    k.e("v_mov_b32 v8, 0\nv_mov_b32 v9, 0\nv_mov_b32 v10, 0\nv_mov_b32 v11, 0")
    k.e("s_mov_b32 s33, 0x3f803f80")
    k.e("v_lshlrev_b32 v12, 7, v3\nv_lshl_add_u32 v12, v4, 3, v12")
    k.e("v_cmp_gt_u32 vcc, 2, v3\nv_cndmask_b32 v12, v15, v12, vcc")
    k.e("s_lshl_b32 s35, s29, 10\ns_lshl_b32 s36, s3, 8\ns_add_u32 s35, s35, s36")
    for ks in range(5):
        k.wait_vm(f"n{2*ks+1}")
        b = L + 4 * ks
        if ks == 2:
            k.vm(f"buffer_store_dwordx2 v[{b}:{b+1}], v7, s[12:15], s32 offen offset:2048{SC}", "st")
            k.vm(f"buffer_store_dwordx2 v[{b+2}:{b+3}], v7, s[12:15], s32 offen offset:2560{SC}", "st")
        elif ks < 4:
            k.vm(f"buffer_store_dwordx4 v[{b}:{b+3}], v5, s[12:15], s32 offen offset:{ks*1024}{SC}", "st")
        else:
            k.vm(f"buffer_store_dwordx4 v[{b}:{b+3}], v5, s[12:15], s34 offen{SC}", "st")
        for q in range(4):
            k.e(f"v_dot2_f32_bf16 v{8+(q&1)}, v{b+q}, s33, v{8+(q&1)}")
            k.e(f"v_dot2_f32_bf16 v{10+(q&1)}, v{b+q}, v{b+q}, v{10+(q&1)}")
    k.e("v_add_f32 v8, v8, v9\nv_add_f32 v10, v10, v11")
    for sw in ("v_permlane16_swap_b32", "v_permlane32_swap_b32"):
        k.e("v_mov_b32 v9, v8\nv_mov_b32 v11, v10")
        k.e(f"{sw} v8, v9\n{sw} v10, v11")
        k.e("v_add_f32 v8, v8, v9\nv_add_f32 v10, v10, v11")
    k.e("v_cmp_eq_u32 vcc, 0, v3")
    k.e("v_cndmask_b32 v8, 0, v8, vcc\nv_cndmask_b32 v9, 0, v10, vcc")
    k.vm(f"buffer_store_dwordx2 v[8:9], v12, s[40:43], s35 offen{SC}", "st")
    k.e("s_branch K0_END")

    k.label("K0_J6")
    k.vmq = []
    k.e(f"s_cmp_ge_u32 {J}, {B_J6B}\ns_cbranch_scc1 K0_J6B")
    k.e(f"s_sub_u32 s29, {J}, {B_J6A}")
    k.ldarg(6, "wqkv")
    k.e("s_mov_b32 s30, 3840")
    k.e("s_waitcnt lgkmcnt(0)")
    k.srd(8, 6, 640 * 1920 * 2)
    k.srd(12, 4, WS["CSQ"][1], WS["CSQ"][0])
    k.e("s_branch K0_J6C")
    k.label("K0_J6B")
    k.e(f"s_sub_u32 s29, {J}, {B_J6B}")
    k.e("s_cmp_ge_u32 s29, 27\ns_cbranch_scc1 K0_J6U")
    k.ldarg(6, "wg")
    k.e("s_waitcnt lgkmcnt(0)")
    k.srd(12, 4, WS["CSG"][1], WS["CSG"][0])
    k.e("s_branch K0_J6D")
    k.label("K0_J6U")
    k.ldarg(6, "wu")
    k.e("s_sub_u32 s29, s29, 27")
    k.e("s_waitcnt lgkmcnt(0)")
    k.srd(12, 4, WS["CSU"][1], WS["CSU"][0])
    k.label("K0_J6D")
    k.e("s_mov_b32 s30, 3456")
    k.srd(8, 6, 640 * 1728 * 2)
    k.label("K0_J6C")
    k.e("v_lshrrev_b32 v6, 3, v2\nv_mul_lo_u32 v6, v6, s30")
    k.e("v_and_b32 v7, 7, v2\nv_lshl_add_u32 v6, v7, 4, v6")
    k.e("s_lshl_b32 s31, s29, 7")
    k.e("v_add_u32 v6, s31, v6")
    k.e("s_mul_i32 s32, s3, 160\ns_mul_i32 s32, s32, s30")
    k.e("s_lshl_b32 s33, s30, 3")
    L = 24
    for it in range(20):
        k.vm(f"buffer_load_dwordx4 v[{L+4*it}:{L+4*it+3}], v6, s[8:11], s32 offen", f"r{it}")
        k.e("s_add_u32 s32, s32, s33")
    for q in range(8):
        k.e(f"v_mov_b32 v{8+q}, 0")
    k.e("s_mov_b32 s34, 0x00003f80\ns_mov_b32 s35, 0x3f800000")
    for it in range(20):
        k.wait_vm(f"r{it}")
        for q in range(4):
            k.e(f"v_dot2_f32_bf16 v{8+2*q}, v{L+4*it+q}, s34, v{8+2*q}")
            k.e(f"v_dot2_f32_bf16 v{9+2*q}, v{L+4*it+q}, s35, v{9+2*q}")
    for q in range(8):
        k.e(f"v_add_f32_dpp v{8+q}, v{8+q}, v{8+q} row_ror:8 row_mask:0xf bank_mask:0xf")
    for sw in ("v_permlane16_swap_b32", "v_permlane32_swap_b32"):
        for q in range(8):
            k.e(f"v_mov_b32 v{16+q}, v{8+q}")
        for q in range(8):
            k.e(f"{sw} v{8+q}, v{16+q}")
        for q in range(8):
            k.e(f"v_add_f32 v{8+q}, v{8+q}, v{16+q}")
    k.e("s_lshl_b32 s36, s3, 8")
    k.e("v_lshlrev_b32 v16, 5, v7\nv_add_u32 v16, s36, v16")
    k.e("ds_write_b128 v16, v[8:11]\nds_write_b128 v16, v[12:15] offset:16")
    k.e("s_waitcnt lgkmcnt(0)\ns_barrier")
    k.e("v_lshlrev_b32 v17, 2, v2")
    k.e("ds_read_b32 v18, v17\nds_read_b32 v19, v17 offset:256\nds_read_b32 v20, v17 offset:512\nds_read_b32 v21, v17 offset:768")
    k.e("s_waitcnt lgkmcnt(0)")
    k.e("v_add_f32 v18, v18, v19\nv_add_f32 v20, v20, v21\nv_add_f32 v18, v18, v20")
    k.e("s_lshl_b32 s31, s29, 8")
    k.vm(f"buffer_store_dword v18, v17, s[12:15], s31 offen{SC}", "st")
    k.e("s_branch K0_END")

    k.label("K0_J7")
    k.e(f"s_sub_u32 s29, {J}, {B_J7}\ns_lshl_b32 s29, s29, 2\ns_add_u32 s29, s29, s3\ns_lshl_b32 s29, s29, 12")
    k.e("s_waitcnt lgkmcnt(0)")
    k.srd(12, 4, WS["KVZ"][1], WS["KVZ"][0])
    k.e("v_mov_b32 v8, 0\nv_mov_b32 v9, 0\nv_mov_b32 v10, 0\nv_mov_b32 v11, 0")
    for q in range(4):
        k.e(f"buffer_store_dwordx4 v[8:11], v5, s[12:15], s29 offen offset:{q*1024}{SC}")
```

```python
from common import *

LOG2E = 0x3fb8aa3b
EPS6 = 0x358637bd
EPS5 = 0x3727c5ac
INV640 = 0x3acccccd
NAME = "main_kernel"

CFG = dict(PDX1=10, PDX3=8, KSIG=8, WOP1=12, EPA_END=34, HAF=38, HBP=4, WD2K=2, WD2B=4, PDO=2, C34=1, C4U=4, WD2R=0)
for _k in list(CFG):
    if os.environ.get(_k):
        CFG[_k] = int(os.environ[_k])

S_W, S_RB, S_CG, S_RB64, S_CG8, S_L = 3, 4, 5, 6, 7, 9
SRD = 12
SRDO = 16
S_MT0, S_MT = 20, 21
S_E1, S_EP = 22, 23
S_WD, S_WO = 48, 49
S_W7, S_WGU = 51, 52
SRDQ = 60
S_FCW, S_FCR, S_FLW, S_FLR = 76, 77, 78, 79
S_HB = 82
RES = 16
STF = " sc1"
LDF = " sc1"
R_ = f"s[{SRD}:{SRD+3}]"

LDS_B = 102400
KVR = 86016
CH = 28672; NSLOT = 5
CSL = 143360
KO = [0, 3, 7, 10, 1, 4, 8, 11, 2, 5, 9, 12, 6, 13]

_lab = [0]
def newlab(p):
    _lab[0] += 1
    return f"{p}_{_lab[0]}"

def lin(k, dst, const, terms, tmp=8):
    first = True
    for (r, m) in terms:
        if first:
            if m == 1:
                k.e(f"s_mov_b32 s{dst}, s{r}")
            else:
                k.e(f"s_mul_i32 s{dst}, s{r}, 0x{m:x}")
        else:
            if m == 1:
                k.e(f"s_add_u32 s{dst}, s{dst}, s{r}")
            else:
                k.e(f"s_mul_i32 s{tmp}, s{r}, 0x{m:x}\ns_add_u32 s{dst}, s{dst}, s{tmp}")
        first = False
    if first:
        k.e(f"s_mov_b32 s{dst}, 0x{const:x}")
    elif const:
        k.e(f"s_add_u32 s{dst}, s{dst}, 0x{const:x}")

def pstamp(k, idx):
    if not PROF:
        return
    k.e("s_memrealtime s[98:99]" if os.environ.get("PROFRT") else "s_memtime s[98:99]")
    k.ds_drain()
    k.e(f"v_writelane_b32 v31, s98, {idx}")

def lds_addr(off):
    return (5, 7, 8)[off >> 16], off & 0xffff

def w0_begin(k):
    L = newlab("W0")
    k.e(f"s_cmp_lg_u32 s{S_W}, 0\ns_cbranch_scc1 {L}")
    return L

def flag_raw(k, s_off):
    k.e("v_mov_b32 v26, 1")
    k.e(f"buffer_atomic_add v26, v28, {R_}, s{s_off} offen sc1")

def flag(k, s_off, s_ep=None):
    L = w0_begin(k)
    flag_raw(k, s_off)
    k.label(L)
    if s_ep is not None:
        k.e(f"s_add_u32 s{s_ep}, s{s_ep}, 1")

def poll_raw(k, s_off, s_tgt):
    L = newlab("PL"); D = newlab("PD")
    k.e("s_mov_b32 s74, 0")
    k.label(L)
    k.e(f"buffer_load_dword v26, v29, {R_}, s{s_off} offen sc1")
    k.e("s_waitcnt vmcnt(0)")
    k.e(f"v_cmp_gt_u32 vcc, s{s_tgt}, v26\ns_cmp_eq_u64 vcc, 0\ns_cbranch_scc1 {D}")
    k.e(f"s_add_u32 s74, s74, 1\ns_cmp_lt_u32 s74, 0x40000\ns_cbranch_scc1 {L}")
    k.label(D)

def poll(k, s_off, s_tgt):
    L = w0_begin(k)
    poll_raw(k, s_off, s_tgt)
    k.label(L)
    k.e("s_barrier")

def poll_issue(k, s_off):
    L = w0_begin(k)
    k.e(f"buffer_load_dword v27, v29, {R_}, s{s_off} offen sc1")
    k.label(L)
    k.poll_pos = len(k.vmq)

def poll_check(k, s_off, s_tgt):
    L = w0_begin(k)
    k.e(f"s_waitcnt vmcnt({min(len(k.vmq) - k.poll_pos, 63)})")
    k.e(f"v_cmp_gt_u32 vcc, s{s_tgt}, v27\ns_cmp_eq_u64 vcc, 0\ns_cbranch_scc1 {L}")
    poll_raw(k, s_off, s_tgt)
    k.label(L)
    k.e("s_barrier")

TRANS_ = ("v_exp_f32", "v_rcp_f32", "v_rsq_f32")
class Rec:
    def __init__(self):
        self.L = []
    def e(self, text):
        for ln in text.split("\n"):
            ln = ln.strip()
            if ln:
                self.L.append(("e", ln, None))
    def ds(self, text, tag=None):
        self.L.append(("ds", text, tag))
    def vm(self, text, tag=None):
        self.L.append(("vm", text, tag))
    def wait_ds(self, tag):
        self.L.append(("wds", "wait", tag))
    def wait_vm(self, tag):
        self.L.append(("wvm", "wait", tag))
    def sel(self, d, a, b):
        self.e(f"s_mov_b32 s{d}, {b}")
        self.e(f"s_cselect_b32 s{d}, {a}, s{d}")
    def groups(self, k, size=1):
        L = self.L
        def wr_vcc(t): return t.startswith("v_cmp") and t.split()[1].startswith("vcc")
        def rd_vcc(t): return t.startswith("v_cndmask") and t.rstrip().endswith("vcc")
        def wr_scc(t): return t.startswith("s_cmp") or t.startswith("s_add_") or t.startswith("s_sub_") or t.startswith("s_and_") or t.startswith("s_lshl") or t.startswith("s_lshr") or t.startswith("s_or_")
        def rd_scc(t): return t.startswith("s_cselect") or t.startswith("s_addc") or t.startswith("s_cbranch")
        def m0w(t): return " m0," in t
        def m0r(t): return t.rstrip().endswith(" lds")
        cut = [True] * len(L)
        for (w, r) in ((wr_vcc, rd_vcc), (wr_scc, rd_scc), (m0w, m0r)):
            last_w = None
            for j in range(len(L)):
                if r(L[j][1]) and last_w is not None:
                    for i in range(last_w, j):
                        cut[i] = False
                if w(L[j][1]):
                    last_w = j
        out, cur = [], []
        def mk(items):
            def f():
                for (kind, t, tag) in items:
                    if kind == "e": k.e(t)
                    elif kind == "ds": k.ds(t, tag)
                    elif kind == "vm": k.vm(t, tag)
                    elif kind == "wds": k.wait_ds(tag)
                    else: k.wait_vm(tag)
            f.cost = sum(2 if t.startswith(TRANS_) else 1 for (_, t, _) in items)
            return f
        for i, it in enumerate(L):
            cur.append(it)
            if cut[i] and len(cur) >= size:
                out.append(mk(cur)); cur = []
        if cur:
            out.append(mk(cur))
        return out

class Fill:
    def __init__(self, L=()):
        self.q = list(L)
    def add(self, L):
        self.q += list(L)
    def pop(self, n=1):
        for _ in range(n):
            if self.q:
                self.q.pop(0)()
    def pop_cost(self, c):
        spent = 0
        while self.q and spent < c:
            f = self.q.pop(0)
            spent += getattr(f, "cost", 1)
            f()
        return spent
    def total(self):
        return sum(getattr(f, "cost", 1) for f in self.q)
    def flush(self):
        while self.q:
            self.q.pop(0)()

MF = "v_mfma_f32_16x16x32_bf16"
def vp(r): return f"v[{r}:{r+1}]"
def v4(r): return f"v[{r}:{r+3}]"
def a4(r): return f"a[{r}:{r+3}]"
def bcm(n, sel):
    lo = [0] * n; h = [1] * n
    for i, hi in sel.items():
        lo[i] = hi; h[i] = hi
    return f"op_sel:[{','.join(map(str, lo))}] op_sel_hi:[{','.join(map(str, h))}]"
def bc(i, n, hi):
    return bcm(n, {i: hi})

def stats_sum(k, st):
    k.e(f"v_add_f32 v{st}, v{st}, v{st+2}")
    k.e(f"v_add_f32 v{st+1}, v{st+1}, v{st+3}")
    for sw in ("v_permlane16_swap_b32", "v_permlane32_swap_b32"):
        k.e(f"v_mov_b32 v{st+2}, v{st}\nv_mov_b32 v{st+3}, v{st+1}")
        k.e(f"{sw} v{st}, v{st+2}\n{sw} v{st+1}, v{st+3}")
        k.e(f"v_add_f32 v{st}, v{st}, v{st+2}\nv_add_f32 v{st+1}, v{st+1}, v{st+3}")

def stats_to_ab(k, st, a, b):
    stats_sum(k, st)
    k.e(f"v_mul_f32 v{st}, 0x{INV640:x}, v{st}")
    k.e(f"v_mul_f32 v{st+1}, 0x{INV640:x}, v{st+1}")
    k.e(f"v_fma_f32 v{st+1}, -v{st}, v{st}, v{st+1}")
    k.e(f"v_max_f32 v{st+1}, 0, v{st+1}")
    k.e(f"v_add_f32 v{st+1}, 0x{EPS5:x}, v{st+1}")
    k.e(f"v_rsq_f32 v{a}, v{st+1}")
    k.e(f"v_mul_f32 v{b}, v{st}, v{a}")
    k.e(f"v_sub_f32 v{b}, 0, v{b}")

def stats_to_rows(k, st, nm, al, c2):
    stats_sum(k, st)
    k.e(f"v_mul_f32 v{nm}, 0x{INV640 | 0x80000000:x}, v{st}")
    k.e(f"v_mul_f32 v{st+1}, 0x{INV640:x}, v{st+1}")
    k.e(f"v_fma_f32 v{st+1}, -v{nm}, v{nm}, v{st+1}")
    k.e(f"v_max_f32 v{st+1}, 0, v{st+1}")
    k.e(f"v_add_f32 v{c2}, 0x{EPS5:x}, v{st+1}")
    k.e(f"v_rsq_f32 v{al}, v{c2}")
    k.e(f"v_mul_f32 v{al}, 0x{LOG2E | 0x80000000:x}, v{al}")

def stats_load(k, st, soff, vtmp, tag):
    k.e(f"v_lshlrev_b32 v{vtmp}, 8, v3\nv_lshl_add_u32 v{vtmp}, v4, 3, v{vtmp}")
    for m in range(2):
        k.vm(f"buffer_load_dwordx2 v[{st+4*m}:{st+4*m+1}], v{vtmp}, {R_}, s{soff} offen offset:{1024*m}{LDF}", tag)
        k.vm(f"buffer_load_dwordx2 v[{st+4*m+2}:{st+4*m+3}], v{vtmp}, {R_}, s{soff} offen offset:{1024*m+128}{LDF}", tag)

def phi_pk(k, xs, ts):
    for x, t in zip(xs, ts):
        for h in (0, 2):
            k.e(f"v_pk_mul_f32 {vp(t+h)}, {vp(x+h)}, s[72:73]")
    for x, t in zip(xs, ts):
        for r in range(4):
            k.e(f"v_exp_f32_e64 v{t+r}, v{t+r} clamp")
    for x, t in zip(xs, ts):
        for r in range(4):
            k.e(f"v_max_f32 v{x+r}, 0, v{x+r}")
    for x, t in zip(xs, ts):
        for h in (0, 2):
            k.e(f"v_pk_add_f32 {vp(t+h)}, {vp(t+h)}, s[70:71]")
    for x, t in zip(xs, ts):
        for h in (0, 2):
            k.e(f"v_pk_add_f32 {vp(x+h)}, {vp(x+h)}, {vp(t+h)}")

def xload(k, dst, ks, so, tag):
    lo = (ks % 4) * 1024
    if ks % 5 != 2:
        k.vm(f"buffer_load_dwordx4 a[{dst}:{dst+3}], v5, {R_}, s{so} offen offset:{lo}{LDF}", tag)
    else:
        k.vm(f"buffer_load_dwordx2 a[{dst}:{dst+1}], v6, {R_}, s{so} offen offset:{lo}{LDF}", tag)
        k.vm(f"buffer_load_dwordx2 a[{dst+2}:{dst+3}], v6, {R_}, s{so} offen offset:{lo+512}{LDF}", tag)

def xa(ks, m):
    return (2 * ks + m) * 4

def x_setup(k, xbuf_const):
    lin(k, 24, xbuf_const, [(S_L, 2 * XS), (S_MT0, 20480)])
    k.e("s_add_u32 s25, s24, 20480")

def x_loader(k):
    def f(ks):
        L = []
        for m in range(2):
            def g(m=m):
                if ks % 4 == 0 and ks:
                    k.e(f"s_add_u32 s{24+m}, s{24+m}, 4096")
                xload(k, xa(ks, m), ks, 24 + m, f"x{ks}")
            L.append(g)
        return L
    return f

def dma_run(k, srd, lds0, s_lds, glob_const, s_glob, nblk, tag, s_tmp=53):
    L = []
    for i in range(nblk):
        def f(i=i):
            if i % 4 == 0:
                k.e(f"s_add_u32 m0, s{s_lds}, {lds0 + 1024*i}")
                k.e(f"s_add_u32 s{s_tmp}, s{s_glob}, 0x{glob_const + 1024*i:x}")
            k.vm(f"buffer_load_dwordx4 v5, s[{srd}:{srd+3}], s{s_tmp} offen offset:{(i%4)*1024} lds", tag)
        L.append(f)
    return L

def wgu_chunk(k, c):
    return dma_run(k, SRD, (c % NSLOT) * CH, S_W7, c * CH, S_WGU, 7, f"c{c}")

def wq_dma(k, region, srd):
    n = 25 if region == 0 else 15
    base = 0 if region == 0 else LDS_B
    def setup():
        k.e(f"s_mul_i32 s54, s{S_W}, {n*1024}")
        lin(k, 55, WS["WQ"][0], [(S_CG, 163840), (54, 1)])
    L = dma_run(k, srd, base, 54, base, 55, n, f"wq{region}")
    f0 = L[0]
    L[0] = lambda: (setup(), f0())
    return L

def wd_reg(f):
    if f < 24:
        return f"a[{160+4*f}:{163+4*f}]"
    if f < 36:
        return f"v[{208+4*(f-24)}:{211+4*(f-24)}]"
    return f"a[{4*(f-36)}:{4*(f-36)+3}]"

def wd_loads(k, f0, f1):
    L = []
    for f in range(f0, f1):
        def g(f=f):
            p, t = f // 5, f % 5
            if f == f0 or t == 0:
                k.e(f"s_add_u32 s58, s{S_WD}, {KO[p] * 5120}")
            if t < 4:
                k.vm(f"buffer_load_dwordx4 {wd_reg(f)}, v5, {R_}, s58 offen offset:{t*1024}", "wd")
            else:
                k.vm(f"buffer_load_dwordx4 {wd_reg(f)}, v9, {R_}, s58 offen", "wd")
        L.append(g)
    return L

def wo_reg(f):
    return f"a[{160+4*f}:{163+4*f}]" if f < 24 else "v[252:255]"

def wo_loads(k):
    L = []
    for f in range(25):
        def g(f=f):
            if f % 4 == 0:
                k.e(f"s_add_u32 s59, s{S_WO}, {(f // 4) * 4096}")
            k.vm(f"buffer_load_dwordx4 {wo_reg(f)}, v5, {R_}, s59 offen offset:{(f%4)*1024}", "wo")
        L.append(g)
    return L

def p1(k):
    BB = 32; ACC1 = 72; ACC2 = 112; ST = 136; CSN = 144; CST = 152
    AT, BT, AN, BN = 164, 166, 168, 176
    TMP = 184; FR = 200; ONES = 220; QF = 224; AD = 236
    def acc(m, t): return ACC1 + (m * 5 + t) * 4 if t < 5 else ACC2 + (m * 3 + t - 5) * 4
    PD = CFG["PDX1"]
    xl = x_loader(k)
    for ks in range(PD):
        for f in xl(ks):
            f()
    def small_loads():
        lin(k, 26, WS["ST"][0], [(S_L, 2 * STS), (S_MT0, 1024)])
        stats_load(k, ST, 26, 10, "small")
        lin(k, 27, WS["CSQ"][0], [(S_CG, 160)])
        k.e("v_lshlrev_b32 v10, 2, v4")
        k.vm(f"buffer_load_dword v{CSN}, v10, {R_}, s27 offen offset:{640*4}", "small")
        k.vm(f"buffer_load_dword v{CSN+2}, v10, {R_}, s27 offen offset:{640*4+64}", "small")
        k.e(f"v_add_u32 v11, {640*4+128}, v10\nv_add_u32 v12, {1280*4-32}, v10")
        k.e("v_cmp_gt_u32 vcc, 8, v4\nv_cndmask_b32 v11, v12, v11, vcc")
        k.vm(f"buffer_load_dword v{CSN+4}, v11, {R_}, s27 offen", "small")
        k.vm(f"buffer_load_dword v{CSN+6}, v12, {R_}, s27 offen offset:64", "small")
        k.vm(f"buffer_load_dword v{CSN+7}, v12, {R_}, s27 offen offset:128", "small")
        k.e("v_lshlrev_b32 v10, 4, v3")
        k.vm(f"buffer_load_dwordx4 v[{CST}:{CST+3}], v10, {R_}, s27 offen", "small")
        k.vm(f"buffer_load_dwordx4 v[{CST+4}:{CST+7}], v10, {R_}, s27 offen offset:64", "small")
        k.e(f"v_mov_b32 v11, 0x{OOB:x}\nv_cmp_gt_u32 vcc, 2, v3\nv_cndmask_b32 v10, v11, v10, vcc")
        k.vm(f"buffer_load_dwordx4 v[{CST+8}:{CST+11}], v10, {R_}, s27 offen offset:128", "small")
    small_loads()
    csn = {0: (CSN, 0), 1: (CSN + 2, 0), 2: (CSN + 4, 0), 3: (CSN + 6, 0), 4: (CSN + 6, 1)}
    pairs = [(0, 2), (0, 3), (1, 2), (1, 3), (1, 4), (2, 3), (2, 4)]
    r1 = Rec()
    T = TMP
    DP, HK, EP, HV = T, T + 3, T + 6, T + 9
    a, b, c, tr, tt_ = T + 12, T + 13, T + 14, T + 15, 13
    r1.e(f"v_lshlrev_b32 v{DP}, 4, v3\nv_mov_b32 v{HK}, 0")
    r1.e(f"v_add_u32 v{a}, {1680-16}, v{DP}\nv_mov_b32 v{b}, 64")
    r1.e(f"v_cmp_eq_u32 vcc, 0, v3")
    r1.e(f"v_cndmask_b32 v{DP+1}, v{a}, v{b}, vcc")
    r1.e(f"v_cndmask_b32 v{HK+1}, 1, v{HK}, vcc")
    r1.e(f"v_add_u32 v{DP+2}, {1680+48}, v{DP}")
    r1.e(f"v_mov_b32 v{b}, 1\nv_cmp_gt_u32 vcc, 2, v3\nv_cndmask_b32 v{HK+2}, 2, v{b}, vcc")
    r1.e(f"v_mul_u32_u24 v{a}, 80, v4")
    r1.e(f"v_subrev_u32 v{EP}, 640, v{a}")
    r1.e(f"v_cmp_le_u32 vcc, 8, v4\nv_cndmask_b32 v{HV}, 3, v{HK}, vcc")
    r1.e(f"v_add_u32 v{b}, 640, v{a}\nv_subrev_u32 v{c}, 960, v{a}")
    r1.e(f"v_mov_b32 v{HV+2}, 1")
    r1.e(f"v_cmp_gt_u32 vcc, 12, v4\nv_cndmask_b32 v{EP+1}, v{c}, v{b}, vcc")
    r1.e(f"v_cndmask_b32 v{HV+1}, 1, v{HK}, vcc")
    r1.e(f"v_add_u32 v{EP+2}, 320, v{a}")
    r1.e(f"s_mul_i32 s28, s{S_W}, 3584\ns_add_u32 s28, s28, {KVR}")
    r1.e(f"v_and_b32 v{tr}, 7, v2\nv_lshlrev_b32 v{tr}, 4, v{tr}\nv_add_u32 v{tr}, 3360, v{tr}")
    for i, (ta, tb) in enumerate(pairs):
        r1.e(f"v_add_u32 v{tt_}, v{DP+ta}, v{EP+tb-2}")
        r1.e(f"v_cmp_eq_u32 vcc, v{HK+ta}, v{HV+tb-2}")
        r1.e(f"v_cndmask_b32 v{tt_}, v{tr}, v{tt_}, vcc")
        r1.e(f"v_add_u32 v{AD+i}, s28, v{tt_}")
    for ta in range(3):
        r1.e(f"v_add_u32 v{tt_}, 1600, v{DP+ta}")
        r1.e(f"v_cmp_gt_u32 vcc, 2, v{HK+ta}")
        r1.e(f"v_cndmask_b32 v{tt_}, v{tr}, v{tt_}, vcc")
        r1.e(f"v_cmp_eq_u32 vcc, 0, v4")
        r1.e(f"v_cndmask_b32 v{tt_}, v{tr}, v{tt_}, vcc")
        r1.e(f"v_add_u32 v{AD+7+ta}, s28, v{tt_}")
    for q in range(4):
        r1.e(f"v_mov_b32 v{ONES+q}, 0x3f803f80")
    r1.e(f"s_mov_b32 s72, 0x{LOG2E:x}\ns_mov_b32 s73, 0x{LOG2E:x}\ns_mov_b32 s70, 0x{EPS6:x}\ns_mov_b32 s71, 0x{EPS6:x}")
    r1.e("v_cmp_gt_u32 s[64:65], 8, v4")
    lin(r1, 29, WS["KV"][0], [(S_L, KVL), (S_CG, KVB)], tmp=30)
    r2 = Rec()
    for m in range(2):
        stats_to_ab(r2, ST + 4 * m, AT + m, BT + m)
    r2.e("v_lshlrev_b32 v10, 4, v3")
    for r in range(1, 4):
        r2.e(f"v_add_u32 v{10+r}, {4*r}, v10")
    for m in range(2):
        for r in range(4):
            r2.ds(f"ds_bpermute_b32 v{AN+4*m+r}, v{10+r}, v{AT+m}", "bp")
            r2.ds(f"ds_bpermute_b32 v{BN+4*m+r}, v{10+r}, v{BT+m}", "bp")
    vf1 = Fill(r1.groups(k)); vf2 = Fill(r2.groups(k))
    def rdB(ks, t):
        b, o = lds_addr(ks * 5120 + t * 1024)
        r = BB + (ks & 1) * 20 + t * 4
        k.ds(f"ds_read_b128 {v4(r)}, v{b} offset:{o}", f"b{ks}")
    sched = {ks: [] for ks in range(20)}
    for ks in range(PD, 20):
        sched[ks - PD] += xl(ks)
    k0 = 20 - PD
    wqb = wq_dma(k, 1, SRD)
    wo = wo_loads(k)
    nwo = CFG["WOP1"]
    rest = wqb + wo[:nwo]
    for i, f in enumerate(rest):
        sched[k0 + (i * (20 - k0)) // len(rest)].append(f)
    wof = Fill(wo[nwo:])
    for ks in range(20):
        k.wait_vm(f"x{ks}")
        if ks == 0:
            k.e("s_barrier")
            pstamp(k, 1)
            for t in range(5):
                rdB(0, t)
        if ks == PD + 1:
            k.wait_vm("small")
        fill = Fill(sched[ks])
        k.wait_ds(f"b{ks}")
        n = 0
        for t in range(5):
            r = BB + (ks & 1) * 20 + t * 4
            for m in range(2):
                cc = "0" if ks == 0 else v4(acc(m, t))
                k.e(f"{MF} {v4(acc(m,t))}, {a4(xa(ks,m))}, {v4(r)}, {cc}")
                if n < 5 and ks + 1 < 20:
                    rdB(ks + 1, n)
                elif n >= 5:
                    fill.pop()
                if n >= 5 or n % 2 == 1:
                    if vf1.q:
                        vf1.pop()
                    elif ks > PD + 1:
                        vf2.pop()
                n += 1
        fill.flush()
    vf1.flush(); vf2.flush()
    pstamp(k, 2)
    def rdB2(ks, tt):
        b, o = lds_addr(LDS_B + ks * 3072 + tt * 1024)
        r = BB + (ks & 1) * 12 + tt * 4
        k.ds(f"ds_read_b128 {v4(r)}, v{b} offset:{o}", f"q{ks}")
    k.ds_drain()
    for t in range(5):
        cb, ch = csn[t]
        for m in range(2):
            for h in (0, 2):
                k.e(f"v_pk_mul_f32 {vp(TMP+4*m+h)}, {vp(BN+4*m+h)}, {vp(cb)} {bc(1, 2, ch)}")
        for m in range(2):
            for h in (0, 2):
                x = acc(m, t) + h
                k.e(f"v_pk_fma_f32 {vp(x)}, {vp(AN+4*m+h)}, {vp(x)}, {vp(TMP+4*m+h)}")
        wof.pop(2)
        if t < 3:
            if t == 2:
                for m in range(2):
                    for r in range(4):
                        k.e(f"v_mov_b32 v{TMP+8+4*m+r}, v{acc(m,t)+r}")
            phi_pk(k, [acc(0, t), acc(1, t)], [TMP, TMP + 4])
            if t == 2:
                for m in range(2):
                    for r in range(4):
                        k.e(f"v_cndmask_b32 v{acc(m,t)+r}, v{TMP+8+4*m+r}, v{acc(m,t)+r}, s[64:65]")
        for m in range(2):
            x = acc(m, t)
            k.e(f"v_cvt_pk_bf16_f32 v{FR+4*t+2*m}, v{x}, v{x+1}")
            k.e(f"v_cvt_pk_bf16_f32 v{FR+4*t+2*m+1}, v{x+2}, v{x+3}")
        wof.pop(1)
    KVD = BB
    for i, (ta, tb) in enumerate(pairs):
        k.e(f"{MF} {v4(KVD+4*i)}, {v4(FR+4*ta)}, {v4(FR+4*tb)}, 0")
    for ta in range(3):
        i = 7 + ta
        k.e(f"{MF} {v4(KVD+4*i)}, {v4(FR+4*ta)}, {v4(ONES)}, 0")
    wof.flush()
    k.e("s_barrier")
    k.e(f"v_lshlrev_b32 v10, 2, v0\nv_add_u32 v11, {KVR}, v10")
    for i in range(10):
        k.ds(f"ds_write_b128 v{AD+i}, {v4(KVD+4*i)}", "kw")
    gf = Fill()
    for c in range(3):
        gf.add(wgu_chunk(k, c))
    k.wait_vm("wq1")
    gf.pop(4)
    k.ds_drain()
    k.e("s_barrier")
    RD = TMP
    for q in range(4):
        for w in range(4):
            k.ds(f"ds_read_b32 v{RD+4*q+w}, v11 offset:{w*3584+q*1024}", f"kr{q}")
    for tt in range(3):
        rdB2(0, tt)
    k.e(f"v_mov_b32 v12, 0x{OOB:x}\nv_cmp_gt_u32 vcc, 72, v0\nv_cndmask_b32 v11, v12, v10, vcc")
    for q in range(4):
        k.wait_ds(f"kr{q}")
        k.e(f"v_pk_add_f32 {vp(RD+4*q)}, {vp(RD+4*q)}, {vp(RD+4*q+2)}")
        k.e(f"v_add_f32 v{RD+4*q}, v{RD+4*q}, v{RD+4*q+1}")
        va = 10 if q < 3 else 11
        k.vm(f"buffer_atomic_add_f32 v{RD+4*q}, v{va}, {R_}, s29 offen offset:{q*1024} sc1", "at")
    pstamp(k, 3)
    r3 = Rec()
    D0L, D0H, D1L, D1H, RA, RB0, RB1 = TMP, TMP + 1, TMP + 2, TMP + 3, TMP + 4, TMP + 5, TMP + 6
    VO = AD
    r3.e(f"v_mov_b32 v10, 0x{OOB:x}")
    r3.e(f"v_lshlrev_b32 v{D0L}, 4, v3")
    r3.e(f"v_mov_b32 v11, 64\nv_subrev_u32 v12, 16, v{D0L}")
    r3.e(f"v_cmp_eq_u32 vcc, 0, v3\nv_cndmask_b32 v{D0H}, v10, v11, vcc\nv_cndmask_b32 v{D1L}, v12, v10, vcc")
    r3.e(f"v_add_u32 v11, 48, v{D0L}\nv_cmp_gt_u32 vcc, 2, v3\nv_cndmask_b32 v{D1H}, v10, v11, vcc")
    r3.e(f"v_mul_u32_u24 v{RA}, 80, v4")
    r3.e(f"v_and_b32 v11, 3, v4\nv_mul_u32_u24 v11, 80, v11\nv_add_u32 v11, 1280, v11\nv_lshrrev_b32 v12, 2, v4")
    r3.e(f"v_cmp_eq_u32 vcc, 0, v12\nv_cndmask_b32 v{RB0}, v10, v11, vcc")
    r3.e(f"v_cmp_eq_u32 vcc, 1, v12\nv_cndmask_b32 v{RB1}, v10, v11, vcc")
    n = 0
    for hh in range(2):
        for ty in range(2):
            for dp in ((D0L, D0H) if hh == 0 else (D1L, D1H)):
                row = RA if ty == 0 else (RB0 if hh == 0 else RB1)
                r3.e(f"v_add_u32 v{VO+n}, v{row}, v{dp}"); n += 1
    r3.e(f"s_lshr_b32 s30, s{S_CG}, 2\ns_and_b32 s31, s{S_CG}, 3")
    lin(r3, 32, WS["O"][0], [(S_L, XS), (S_MT0, 20480), (30, 5120)], tmp=34)
    r3.e("s_lshl_b32 s33, s31, 8\ns_add_u32 s33, s33, s32\ns_add_u32 s33, s33, 2048")
    r3.e("s_cmp_ge_u32 s31, 2\ns_cselect_b32 s34, 1, 0\ns_add_u32 s34, s34, s31\ns_lshl_b32 s34, s34, 10\ns_add_u32 s32, s32, s34")
    VC = VO + 8
    r3.e(f"v_lshlrev_b32 v11, 4, v4\nv_lshl_add_u32 v11, v3, 3, v11")
    r3.e(f"v_cmp_gt_u32 vcc, 2, v3\nv_cndmask_b32 v{VC}, v10, v11, vcc")
    r3.e("v_cmp_eq_u32 s[64:65], 0, v3")
    xio(r3, WS["X"][0] + XS)
    vf3 = Fill(r3.groups(k))
    for ks in range(20):
        if ks == CFG["KSIG"]:
            k.wait_vm("at")
            k.e("s_barrier")
            flag(k, S_FCW)
        if ks == 17:
            assert not vf3.q or True
            vf3.flush()
            poll_issue(k, S_FCR)
        k.wait_ds(f"q{ks}")
        n = 0
        for tt in range(3):
            r = BB + (ks & 1) * 12 + tt * 4
            for m in range(2):
                A = acc(m, 5 + tt)
                cc = "0" if ks == 0 else v4(A)
                k.e(f"{MF} {v4(A)}, {v4(r)}, {a4(xa(ks,m))}, {cc}")
                if n < 3 and ks + 1 < 20:
                    rdB2(ks + 1, n)
                    if ks >= 1:
                        vf3.pop()
                elif n == 3:
                    gf.pop()
                elif ks >= 1:
                    vf3.pop(2)
                n += 1
    gf.flush(); vf3.flush()
    pstamp(k, 4)
    poll_check(k, S_FCR, S_E1)
    pstamp(k, 5)
    KVF = 32
    for hh in range(2):
        dl, dh = (D0L, D0H) if hh == 0 else (D1L, D1H)
        for ty in (2, 0, 1):
            for half, dp in enumerate((dl, dh)):
                r = KVF + (hh * 3 + ty) * 8 + 4 * half
                if ty == 2:
                    k.vm(f"buffer_load_dwordx4 {v4(r)}, v{dp}, {R_}, s29 offen offset:{hh*1680+1600} sc1", "kv")
                else:
                    vo = VO + hh * 4 + ty * 2 + half
                    k.vm(f"buffer_load_dwordx4 {v4(r)}, v{vo}, {R_}, s29 offen offset:{hh*1680} sc1", "kv")
    for t in range(5, 8):
        ts = [ST, ST + 4]
        for m in range(2):
            for h in (0, 2):
                k.e(f"v_pk_mul_f32 {vp(ts[m]+h)}, {vp(CST+4*(t-5)+h)}, {vp(BT)} {bc(1, 2, m)}")
        for m in range(2):
            for h in (0, 2):
                x = acc(m, t) + h
                k.e(f"v_pk_fma_f32 {vp(x)}, {vp(x)}, {vp(AT)}, {vp(ts[m]+h)} {bc(1, 3, m)}")
        phi_pk(k, [acc(0, t), acc(1, t)], ts)
        for m in range(2):
            x = acc(m, t)
            k.e(f"v_cvt_pk_bf16_f32 v{QF+6*m+2*(t-5)}, v{x}, v{x+1}")
            k.e(f"v_cvt_pk_bf16_f32 v{QF+6*m+2*(t-5)+1}, v{x+2}, v{x+3}")
    k.wait_vm("kv")
    for fi in (2, 5, 0, 3, 1, 4):
        r = KVF + fi * 8
        k.e(f"v_cvt_pk_bf16_f32 v{r}, v{r}, v{r+1}\nv_cvt_pk_bf16_f32 v{r+1}, v{r+2}, v{r+3}")
        k.e(f"v_cvt_pk_bf16_f32 v{r+2}, v{r+4}, v{r+5}\nv_cvt_pk_bf16_f32 v{r+3}, v{r+6}, v{r+7}")
    OD = 80
    for ty in (2, 0, 1):
        for m in range(2):
            for hh in range(2):
                F = v4(QF + 6 * m + 2 * hh)
                o = OD + 20 * m
                fa = KVF + (hh * 3 + ty) * 8
                if ty == 2:
                    k.e(f"{MF} {v4(o+12+4*hh)}, {v4(fa)}, {F}, 0")
                elif ty == 0:
                    k.e(f"{MF} {v4(o+4*hh)}, {v4(fa)}, {F}, 0")
                else:
                    k.e(f"{MF} {v4(o+8)}, {v4(fa)}, {F}, {'0' if hh == 0 else v4(o+8)}")
    for m in range(2):
        o = OD + 20 * m
        k.e(f"v_add_f32 v{o+12}, s70, v{o+12}\nv_add_f32 v{o+16}, s70, v{o+16}")
    for m in range(2):
        o = OD + 20 * m
        k.e(f"v_rcp_f32 v{o+12}, v{o+12}\nv_rcp_f32 v{o+16}, v{o+16}")
    for m in range(2):
        o = OD + 20 * m
        k.e(f"v_cndmask_b32 v{o+14}, v{o+16}, v{o+12}, s[64:65]")
        for h in (0, 2):
            k.e(f"v_pk_mul_f32 {vp(o+h)}, {vp(o+h)}, {vp(o+12)} {bc(1, 2, 0)}")
            k.e(f"v_pk_mul_f32 {vp(o+4+h)}, {vp(o+4+h)}, {vp(o+16)} {bc(1, 2, 0)}")
    for m in range(2):
        o = OD + 20 * m
        k.e(f"v_cvt_pk_bf16_f32 v{o}, v{o}, v{o+1}\nv_cvt_pk_bf16_f32 v{o+1}, v{o+2}, v{o+3}")
        k.e(f"v_cvt_pk_bf16_f32 v{o+2}, v{o+4}, v{o+5}\nv_cvt_pk_bf16_f32 v{o+3}, v{o+6}, v{o+7}")
        if m == 1:
            k.e("s_add_u32 s32, s32, 20480")
        k.vm(f"buffer_store_dwordx4 {v4(o)}, v5, {R_}, s32 offen{STF}", "st")
    for m in range(2):
        o = OD + 20 * m
        for h in (0, 2):
            k.e(f"v_pk_mul_f32 {vp(o+8+h)}, {vp(o+8+h)}, {vp(o+14)} {bc(1, 2, 0)}")
        k.e(f"v_cvt_pk_bf16_f32 v{o+8}, v{o+8}, v{o+9}\nv_cvt_pk_bf16_f32 v{o+9}, v{o+10}, v{o+11}")
        if m == 1:
            k.e("s_add_u32 s33, s33, 20480")
        k.vm(f"buffer_store_dwordx2 {vp(o+8)}, v{VC}, {R_}, s33 offen{STF}", "st")
    pstamp(k, 6)
    k.wait_vm("st")
    pstamp(k, 20)
    k.e("s_barrier")
    flag(k, S_FLW, S_EP)
    poll(k, S_FLR, S_EP)
    pstamp(k, 7)

ACCK = 32
def red_write(k, ml):
    k.e(f"v_add_u32 v10, s{40+ml}, v5")
    for t in range(5):
        a = ACCK + (ml * 5 + t) * 4
        k.ds(f"ds_write_b128 v10, {v4(a)} offset:{t*1024}", "rw")

def red_setup(k):
    for ml in range(3):
        d = 40 + ml
        k.e(f"s_add_u32 s{d}, s{S_W}, {1+ml}\ns_and_b32 s{d}, s{d}, 3")
        k.e(f"s_mul_i32 s{d}, s{d}, {3*5120}\ns_add_u32 s{d}, s{d}, {LDS_B + ml*5120}")
    k.e(f"s_mul_i32 s43, s{S_W}, {15*1024}\ns_add_u32 s43, s43, {LDS_B}")

def xio_setup(k):
    lin(k, 66, 0, [(S_MT, 20480)])
    k.e(f"s_and_b32 s46, s{S_CG8}, 1")
    k.e(f"s_mul_i32 s47, s{S_CG8}, 5\ns_lshr_b32 s47, s47, 1")
    k.e(f"s_lshl_b32 s47, s47, 10\ns_add_u32 s66, s66, s47")
    k.e(f"s_cmp_eq_u32 s46, 1")
    k.sel(47, 512, 2048)
    k.e(f"s_add_u32 s67, s66, s47")
    k.e(f"s_cmp_eq_u32 s46, 1")
    k.e(f"s_cselect_b32 s47, 1024, 0\ns_add_u32 s66, s66, s47")

def xio(k, buf_const):
    k.e(f"s_mul_i32 s45, s{S_L}, 0x{2*XS:x}\ns_add_u32 s45, s45, 0x{buf_const:x}")
    k.e("s_add_u32 s44, s45, s66\ns_add_u32 s45, s45, s67")

def red_finish(k, T, fill=None):
    k.e(f"v_add_u32 v10, s43, v5")
    for j in range(3):
        for t in range(5):
            r = T + (j * 5 + t) * 4
            k.ds(f"ds_read_b128 {v4(r)}, v10 offset:{(j*5+t)*1024}", f"rr{j}")
    own = ACCK + 15 * 4
    U = T + 60
    for q in range(10):
        k.e(f"v_lshlrev_b32 v{U+2*q}, 16, v{RES+q}\nv_and_b32 v{U+2*q+1}, 0xffff0000, v{RES+q}")
    for q in range(10):
        k.e(f"v_pk_add_f32 {vp(own+2*q)}, {vp(own+2*q)}, {vp(U+2*q)}")
    if fill:
        fill.pop(4)
    for j in range(3):
        k.wait_ds(f"rr{j}")
        for q in range(10):
            k.e(f"v_pk_add_f32 {vp(own+2*q)}, {vp(own+2*q)}, {vp(T+j*20+2*q)}")
    for q in range(10):
        k.e(f"v_cvt_pk_bf16_f32 v{RES+q}, v{own+2*q}, v{own+2*q+1}")

def x_store(k, st_const, st_lstride):
    P = RES
    k.vm(f"buffer_store_dwordx4 {v4(P)}, v5, {R_}, s44 offen{STF}", "st")
    k.vm(f"buffer_store_dwordx4 {v4(P+4)}, v5, {R_}, s44 offen offset:1024{STF}", "st")
    k.vm(f"buffer_store_dwordx2 {vp(P+8)}, v6, {R_}, s45 offen{STF}", "st")
    k.e("s_mov_b32 s46, 0x3f803f80")
    k.e("v_mov_b32 v10, 0\nv_mov_b32 v11, 0\nv_mov_b32 v12, 0\nv_mov_b32 v13, 0")
    for q in range(10):
        k.e(f"v_dot2_f32_bf16 v{10+2*(q&1)}, v{P+q}, s46, v{10+2*(q&1)}")
        k.e(f"v_dot2_f32_bf16 v{11+2*(q&1)}, v{P+q}, v{P+q}, v{11+2*(q&1)}")
    k.e(f"v_lshlrev_b32 v14, 3, v4\nv_mov_b32 v15, 0x{OOB:x}")
    k.e("v_cmp_eq_u32 vcc, 0, v3\nv_cndmask_b32 v14, v15, v14, vcc")
    lin(k, 46, st_const, [(S_L, st_lstride), (S_MT, 1024), (S_CG8, 128)])
    k.e("v_pk_add_f32 v[10:11], v[10:11], v[12:13]")
    for sw in ("v_permlane16_swap_b32", "v_permlane32_swap_b32"):
        k.e("v_mov_b32 v12, v10\nv_mov_b32 v13, v11")
        k.e(f"{sw} v10, v12\n{sw} v11, v13")
        k.e("v_pk_add_f32 v[10:11], v[10:11], v[12:13]")
    k.vm(f"buffer_store_dwordx2 v[10:11], v14, {R_}, s46 offen{STF}", "st")

def short_mt(k, ml, dst):
    k.e(f"s_add_u32 s{dst}, s{S_W}, {1+ml}\ns_and_b32 s{dst}, s{dst}, 3\ns_lshl_b32 s8, s{S_RB64}, 2\ns_add_u32 s{dst}, s{dst}, s8")

def o_setup(k):
    for ml in range(4):
        short_mt(k, ml, 35)
        lin(k, 36 + ml, WS["O"][0], [(35, 20480), (S_W, 5120)])

def p2(k):
    def oload(kk, ml):
        r = (ml * 5 + kk) * 4
        if kk < 4:
            k.vm(f"buffer_load_dwordx4 {a4(r)}, v5, {R_}, s{36+ml} offen offset:{kk*1024}{LDF}", f"o{ml}_{kk}")
        else:
            k.vm(f"buffer_load_dwordx4 {a4(r)}, v9, {R_}, s{36+ml} offen{LDF}", f"o{ml}_{kk}")
    PO = CFG["PDO"]
    for kk in range(PO):
        for ml in range(4):
            oload(kk, ml)
    wd = wd_loads(k, 0, 24)
    x_setup(k, WS["X"][0] + XS)
    wdf = Fill()
    for kk in range(5):
        if kk == 5 - CFG["WD2K"]:
            wdf.add(wd[:5 * kk])
        for ml in range(4):
            k.wait_vm(f"o{ml}_{kk}")
            if ml == 0 and kk == 0:
                pstamp(k, 8)
            r = (ml * 5 + kk) * 4
            for t in range(5):
                a_ = ACCK + (ml * 5 + t) * 4
                cc = "0" if kk == 0 else v4(a_)
                k.e(f"{MF} {v4(a_)}, {wo_reg(kk*5+t)}, {a4(r)}, {cc}")
                if t == 0 and kk + PO < 5:
                    oload(kk + PO, ml)
                if t in (1, 3):
                    wdf.pop()
            if kk == 4 and ml >= 1:
                red_write(k, ml - 1)
    n_used = 5 * (5 - CFG["WD2K"])
    wdf.add(wd[n_used:])
    wdf.pop(CFG["WD2B"])
    k.ds_drain()
    k.e("s_barrier")
    pstamp(k, 9)
    red_finish(k, 112, wdf if CFG["WD2R"] else None)
    x_store(k, WS["ST"][0] + STS, 2 * STS)
    wdf.flush()
    if CFG["C34"] == 1:
        k.e("s_barrier")
        for f in wgu_chunk(k, 3):
            f()
    pstamp(k, 10)
    k.wait_vm("st")
    pstamp(k, 21)
    k.e("s_barrier")
    flag(k, S_FLW, S_EP)
    if not CFG["C34"]:
        for f in wgu_chunk(k, 3) + wgu_chunk(k, 4):
            f()
    poll(k, S_FLR, S_EP)
    pstamp(k, 11)

HB = 112
NB = 6
def hb(p, ml): return HB + (p % NB) * 16 + ml * 4

def h_setup(k):
    for ml in range(4):
        short_mt(k, ml, 35)
        d = S_HB + 4 * ml
        lin(k, d, WS["H"][0], [(35, 56 * 1024), (S_W, 14 * 1024)])
        for q in range(1, 4):
            k.e(f"s_add_u32 s{d+q}, s{d}, {4096*q}")

def h_stage(k, p):
    ks = KO[p]
    L = []
    for ml in range(4):
        def f(ml=ml):
            b = hb(p, ml)
            so = S_HB + 4 * ml + ks // 4
            lo = (ks % 4) * 1024
            if ks % 7 != 6:
                k.vm(f"buffer_load_dwordx4 {v4(b)}, v5, {R_}, s{so} offen offset:{lo}{LDF}", f"h{p}")
            else:
                k.vm(f"buffer_load_dwordx2 {vp(b)}, v6, {R_}, s{so} offen offset:{lo}{LDF}", f"h{p}")
                k.vm(f"buffer_load_dwordx2 {vp(b+2)}, v6, {R_}, s{so} offen offset:{lo+512}{LDF}", f"h{p}")
        L.append(f)
    return L

def p3(k):
    BB = 32; ACCB = 64; ACCA = 112; CS = 176; TM = 192; ST = 200
    C2, NM, AL = 10, 12, 14
    VCS = ST + 7
    def accA(m, j): return ACCA + (m * 8 + j) * 4
    def accB(m, j): return ACCB + (m * 6 + j) * 4
    NU = 80
    def unit(u):
        if u < 40:
            ks, hf = u // 2, u % 2
            return ks, 4, 8 * ks + 4 * hf, [lambda m, t=t: accA(m, 4 * hf + t) for t in range(4)]
        ks, hf = (u - 40) // 2, u % 2
        return ks, 3, 160 + 6 * ks + 3 * hf, [lambda m, t=t: accB(m, 3 * hf + t) for t in range(3)]
    def bbuf(u, t): return BB + (u & 1) * 16 + t * 4
    def rdB(u, t):
        i = unit(u)[2] + t
        off = (i % (NSLOT * 28)) * 1024
        b, o = lds_addr(off)
        k.ds(f"ds_read_b128 {v4(bbuf(u, t))}, v{b} offset:{o}", f"b{u}")
    PD = CFG["PDX3"]
    xl = x_loader(k)
    for ks in range(PD):
        for f in xl(ks):
            f()
    def small_loads():
        lin(k, 26, WS["ST"][0] + STS, [(S_L, 2 * STS), (S_MT0, 1024)])
        stats_load(k, ST, 26, 14, "small")
        lin(k, 27, WS["CSG"][0], [(S_CG, 432)])
        k.e(f"s_mov_b32 m0, {CSL}")
        k.vm(f"buffer_load_dwordx4 v5, {R_}, s27 offen lds", "small")
        k.e(f"s_add_u32 s27, s27, {WS['CSU'][0] - WS['CSG'][0]}\ns_mov_b32 m0, {CSL + 1024}")
        k.vm(f"buffer_load_dwordx4 v5, {R_}, s27 offen lds", "small")
    small_loads()
    sched = {u: [] for u in range(NU)}
    for ks in range(PD, 20):
        L = xl(ks)
        sched[2 * (ks - PD)].append(L[0])
        sched[2 * (ks - PD) + 1].append(L[1])
    refills = [((5, 6), 14, 27), ((7, 8), 28, 35), ((9,), 35, 40)]
    if CFG["C34"] == 1:
        refills = [((4,), CFG["C4U"], 13)] + refills
    elif CFG["C34"]:
        refills = [((3, 4), CFG["C34"], 13)] + refills
    for (cs_, u0, u1) in refills:
        L = []
        for c in cs_:
            L += wgu_chunk(k, c)
        for i, f in enumerate(L):
            sched[u0 + (i * (u1 - u0)) // len(L)].append(f)
    wv = wd_loads(k, 24, 36)
    for i, f in enumerate(wv):
        sched[40 + i].append(f)
    wa = wd_loads(k, 36, 70)
    pos = 52
    for j, f in enumerate(wa):
        umin = 42 + 2 * (j >> 1)
        uu = max(umin, pos)
        if len(sched[uu]) >= 2:
            uu += 1
        uu = min(uu, NU - 1)
        sched[uu].append(f); pos = uu
    r2 = Rec()
    for m in range(2):
        stats_to_rows(r2, ST + 4 * m, NM + m, AL + m, C2 + m)
    r2.e(f"v_lshlrev_b32 v{VCS}, 4, v3\nv_add_u32 v{VCS}, {CSL}, v{VCS}")
    r2.e("v_cmp_gt_u32 s[64:65], 3, v3")
    r2.e(f"s_lshr_b32 s34, s{S_CG}, 1\ns_and_b32 s35, s{S_CG}, 1")
    lin(r2, 30, WS["H"][0], [(S_L, HS), (S_MT0, 56 * 1024), (34, 7 * 1024)], tmp=8)
    r2.e(f"s_lshl_b32 s32, s35, 9\ns_add_u32 s32, s32, {6*1024}\ns_add_u32 s32, s32, s30")
    r2.e(f"s_mul_i32 s34, s35, {3*1024}\ns_add_u32 s30, s30, s34")
    r2.e(f"s_add_u32 s31, s30, {56*1024}\ns_add_u32 s33, s32, {56*1024}")
    xio(r2, WS["X"][0] + 2 * XS)
    vf = Fill(r2.groups(k))
    ra = Rec()
    for tp in range(2):
        t0 = 2 * tp
        for i in range(2):
            ra.ds(f"ds_read_b128 {v4(CS+4*i)}, v{VCS} offset:{64*(t0+i)}", f"csa{tp}")
            ra.ds(f"ds_read_b128 {v4(CS+8+4*i)}, v{VCS} offset:{1024+64*(t0+i)}", f"csa{tp}")
        for m in range(2):
            E = [(accA(m, t0 + i) + r, accA(m, 4 + t0 + i) + r, CS + 4 * i + r, CS + 8 + 4 * i + r, TM + 4 * i + r) for i in range(2) for r in range(4)]
            if m == 0:
                ra.wait_ds(f"csa{tp}")
            for (x, y, cg_, cu, t) in E:
                ra.e(f"v_fma_f32 v{x}, v{cg_}, v{NM+m}, v{x}")
            for (x, y, cg_, cu, t) in E:
                ra.e(f"v_mul_f32 v{t}, v{x}, v{AL+m}")
            for (x, y, cg_, cu, t) in E:
                ra.e(f"v_exp_f32 v{t}, v{t}")
                ra.e(f"v_fma_f32 v{y}, v{cu}, v{NM+m}, v{y}")
            for (x, y, cg_, cu, t) in E:
                ra.e(f"v_fma_f32 v{t}, v{t}, v{C2+m}, v{C2+m}")
            for (x, y, cg_, cu, t) in E:
                ra.e(f"v_rcp_f32 v{t}, v{t}")
                ra.e(f"v_mul_f32 v{x}, v{x}, v{y}")
            for (x, y, cg_, cu, t) in E:
                ra.e(f"v_mul_f32 v{x}, v{x}, v{t}")
            P = accA(m, 4 + t0)
            for i in range(2):
                x = accA(m, t0 + i)
                ra.e(f"v_cvt_pk_bf16_f32 v{P+2*i}, v{x}, v{x+1}")
                ra.e(f"v_cvt_pk_bf16_f32 v{P+2*i+1}, v{x+2}, v{x+3}")
            ra.vm(f"buffer_store_dwordx4 {v4(P)}, v5, {R_}, s{30+m} offen offset:{tp*1024}{STF}", "ha")
    ea = Fill(ra.groups(k))
    ea_total = ea.total()
    ea_first, ea_last = 41, CFG["EPA_END"] + 40
    ea_done = 0
    for u in range(NU):
        ks, nf, i0, accs = unit(u)
        if u % 2 == 0 and u < 40:
            k.wait_vm(f"x{ks}")
        if u == 0:
            k.e("s_barrier")
            pstamp(k, 12)
            for t in range(nf):
                rdB(0, t)
        if u == 2 * (PD + 1):
            k.wait_vm("small")
        k.wait_ds(f"b{u}")
        if u in (13, 27, 34, 50) or (u == 20 and CFG["C34"] > 1):
            if u == 20:
                k.wait_vm("c3")
            if u == 27:
                k.wait_vm("c6")
            if u == 50:
                k.wait_vm("c9")
            k.e("s_barrier")
        if u == 40:
            vf.flush()
            pstamp(k, 13)
        if u == 40 + CFG["HAF"]:
            ea.flush()
            k.wait_vm("ha")
            k.e("s_barrier")
            flag(k, S_FLW, S_EP)
        fill = Fill(sched[u])
        nn = unit(u + 1)[1] if u + 1 < NU else 0
        quota = 0
        if ea_first <= u <= ea_last:
            quota = -(-(ea_total * (u - ea_first + 1)) // (ea_last - ea_first + 1)) - ea_done
        n = 0
        nm = 2 * nf
        for t in range(nf):
            r = bbuf(u, t)
            for m in range(2):
                A = accs[t](m)
                cc = "0" if ks == 0 else v4(A)
                k.e(f"{MF} {v4(A)}, {v4(r)}, {a4(xa(ks,m))}, {cc}")
                used = 0
                if n < nn:
                    rdB(u + 1, n); used += 1
                elif fill.q:
                    fill.pop(); used += 1
                if u < 40:
                    if used == 0 and u > 2 * (PD + 1):
                        vf.pop_cost(2)
                    elif n >= nn and u > 2 * (PD + 1):
                        vf.pop_cost(1)
                elif quota > 0:
                    left = nm - n
                    c = max(2 - used, -(-quota // left)) if n < nm - 1 else quota
                    sp = ea.pop_cost(min(c, quota))
                    quota -= sp; ea_done += sp
                n += 1
        fill.flush()
    ea.flush()
    pstamp(k, 14)
    CSB = BB
    for j in range(3):
        k.ds(f"ds_read_b128 {v4(CSB+4*j)}, v{VCS} offset:{64*(4+j)}", f"cs{j}")
        k.ds(f"ds_read_b128 {v4(CSB+12+4*j)}, v{VCS} offset:{1024+64*(4+j)}", f"cs{j}")
    assert 40 + CFG["HAF"] < NU
    hf = Fill()
    def tiles(m, js):
        for j in js:
            k.wait_ds(f"cs{j}")
            if j == 2 and m == 0:
                for r in range(4):
                    k.e(f"v_cndmask_b32 v{CSB+8+r}, 0, v{CSB+8+r}, s[64:65]\nv_cndmask_b32 v{CSB+20+r}, 0, v{CSB+20+r}, s[64:65]")
        Q = [(j, h, TM + 4 * i + h) for i, j in enumerate(js) for h in (0, 2)]
        for (j, h, tm) in Q:
            x = accB(m, j) + h
            k.e(f"v_pk_fma_f32 {vp(x)}, {vp(CSB+4*j+h)}, {vp(NM)}, {vp(x)} {bc(1, 3, m)}")
        for (j, h, tm) in Q:
            k.e(f"v_pk_mul_f32 {vp(tm)}, {vp(accB(m,j)+h)}, {vp(AL)} {bc(1, 2, m)}")
        for (j, h, tm) in Q:
            k.e(f"v_exp_f32 v{tm}, v{tm}\nv_exp_f32 v{tm+1}, v{tm+1}")
        hf.pop(2)
        for (j, h, tm) in Q:
            y = accB(m, 3 + j) + h
            k.e(f"v_pk_fma_f32 {vp(y)}, {vp(CSB+12+4*j+h)}, {vp(NM)}, {vp(y)} {bc(1, 3, m)}")
        for (j, h, tm) in Q:
            k.e(f"v_pk_fma_f32 {vp(tm)}, {vp(tm)}, {vp(C2)}, {vp(C2)} {bcm(3, {1: m, 2: m})}")
        for (j, h, tm) in Q:
            k.e(f"v_rcp_f32 v{tm}, v{tm}\nv_rcp_f32 v{tm+1}, v{tm+1}")
        hf.pop(2)
        for (j, h, tm) in Q:
            x = accB(m, j) + h
            k.e(f"v_pk_mul_f32 {vp(x)}, {vp(x)}, {vp(accB(m,3+j)+h)}")
        hf.pop(2)
        for (j, h, tm) in Q:
            x = accB(m, j) + h
            k.e(f"v_pk_mul_f32 {vp(x)}, {vp(x)}, {vp(tm)}")
        P = accB(m, 3 + js[0])
        for i, j in enumerate(js):
            x = accB(m, j)
            k.e(f"v_cvt_pk_bf16_f32 v{P+2*i}, v{x}, v{x+1}")
            k.e(f"v_cvt_pk_bf16_f32 v{P+2*i+1}, v{x+2}, v{x+3}")
        if len(js) == 2:
            k.vm(f"buffer_store_dwordx4 {v4(P)}, v5, {R_}, s{30+m} offen offset:2048{STF}", "st")
        else:
            k.vm(f"buffer_store_dwordx2 {vp(P)}, v6, {R_}, s{32+m} offen{STF}", "st")
        hf.pop(2)
    tiles(0, (0, 1))
    poll_issue(k, S_FLR)
    tiles(0, (2,))
    poll_check(k, S_FLR, S_EP)
    pstamp(k, 22)
    for p in range(4):
        hf.add(h_stage(k, p))
    tiles(1, (0, 1))
    tiles(1, (2,))
    hf.flush()
    pstamp(k, 15)

def p4(k):
    for p in (4, 5):
        for f in h_stage(k, p):
            f()
    HBP = CFG["HBP"]
    wq = Fill(wq_dma(k, 0, SRDQ))
    for p in range(14):
        L = []
        if p == 2:
            k.wait_vm("st")
            k.e("s_barrier")
            flag(k, S_FLW, S_EP)
        if 1 <= p <= 2:
            L += h_stage(k, p + 5)
        if p == HBP - 1:
            poll_issue(k, S_FLR)
        if p == HBP:
            poll_check(k, S_FLR, S_EP)
            pstamp(k, 23)
            for q in range(8, HBP + 6):
                L += h_stage(k, q)
        elif p > HBP and p + 5 < 14:
            L += h_stage(k, p + 5)
        fill = Fill(L)
        k.wait_vm(f"h{p}")
        if p == 0:
            pstamp(k, 16)
        i = 0
        for ml in range(4):
            for t in range(5):
                a_ = ACCK + (ml * 5 + t) * 4
                cc = "0" if p == 0 else v4(a_)
                k.e(f"{MF} {v4(a_)}, {wd_reg(p*5+t)}, {v4(hb(p, ml))}, {cc}")
                i += 1
                if i % 2 == 0:
                    if fill.q:
                        fill.pop()
                    elif p >= 9 and i % 4 == 0:
                        wq.pop()
            if p == 13 and ml >= 1:
                red_write(k, ml - 1)
        fill.flush()
    pstamp(k, 17)
    k.ds_drain()
    k.e("s_barrier")
    red_finish(k, 112, wq)
    k.e(f"s_cmp_eq_u32 s{S_L}, 1\ns_cbranch_scc1 FINAL")
    x_store(k, WS["ST"][0] + 2 * STS, 2 * STS)
    wq.flush()
    pstamp(k, 18)
    for ml in range(4):
        k.e(f"s_add_u32 s{36+ml}, s{36+ml}, 0x{XS:x}")
    for q in range(16):
        k.e(f"s_add_u32 s{S_HB+q}, s{S_HB+q}, 0x{HS:x}")
    k.wait_vm("st")
    pstamp(k, 24)
    k.e("s_barrier")
    flag(k, S_FLW, S_EP)
    k.e(f"s_add_u32 s{S_L}, s{S_L}, 1")
    x_setup(k, WS["X"][0])
    poll(k, S_FLR, S_EP)
    k.e(f"s_add_u32 s{S_E1}, s{S_E1}, 1")
    pstamp(k, 19)

def final_store(k):
    P = RES
    k.e("v_mul_u32_u24 v10, 1280, v4\nv_lshl_add_u32 v10, v3, 3, v10")
    lin(k, 46, 0, [(S_MT, 20480), (S_CG8, 160)])
    k.e(f"s_and_b32 s47, s{S_CG8}, 1")
    for t in range(5):
        k.e(f"s_cmp_eq_u32 s47, 1")
        k.sel(50, 32 * ((t + 1) % 5), 32 * t)
        k.e("s_add_u32 s50, s50, s46")
        k.vm(f"buffer_store_dwordx2 v[{P+2*t}:{P+2*t+1}], v10, s[{SRDO}:{SRDO+3}], s50 offen", "st")

def build_main():
    k = K(NAME)
    k.e("s_cmp_ge_u32 s2, 256")
    k.e("s_cbranch_scc1 MAIN_END")
    k.ldarg(10, "ws")
    k.ldarg(36, "out")
    k.e("s_and_b32 s24, s2, 7\ns_lshr_b32 s25, s2, 3")
    k.e("s_lshr_b32 s26, s24, 1\ns_and_b32 s24, s24, 1")
    k.e(f"s_lshl_b32 s{S_RB}, s26, 2\ns_lshr_b32 s27, s25, 3\ns_add_u32 s{S_RB}, s{S_RB}, s27")
    k.e(f"s_lshl_b32 s{S_CG}, s24, 3\ns_and_b32 s27, s25, 7\ns_add_u32 s{S_CG}, s{S_CG}, s27")
    k.e(f"s_lshl_b32 s{S_RB64}, s26, 3\ns_lshr_b32 s27, s25, 2\ns_add_u32 s{S_RB64}, s{S_RB64}, s27")
    k.e(f"s_lshl_b32 s{S_CG8}, s24, 2\ns_and_b32 s27, s25, 3\ns_add_u32 s{S_CG8}, s{S_CG8}, s27")
    k.e("v_lshrrev_b32 v1, 6, v0")
    k.e("v_and_b32 v2, 63, v0")
    k.e(f"v_readfirstlane_b32 s{S_W}, v1")
    k.e("v_lshrrev_b32 v3, 4, v2")
    k.e("v_and_b32 v4, 15, v2")
    k.e("v_lshlrev_b32 v5, 4, v2")
    k.e("v_lshlrev_b32 v6, 3, v2")
    k.e("v_add_u32 v7, 0x10000, v5\nv_add_u32 v8, 0x20000, v5\nv_add_u32 v9, 4096, v5")
    k.e("v_lshlrev_b32 v29, 2, v4")
    k.e(f"v_mov_b32 v28, 0x{OOB:x}\nv_cmp_eq_u32 vcc, 0, v2\nv_cndmask_b32 v28, v28, v2, vcc")
    if PROF:
        k.e("v_mov_b32 v31, 0\nv_mov_b32 v30, 0")
    k.e(f"s_lshl_b32 s{S_MT0}, s{S_RB}, 3\ns_lshl_b32 s27, s{S_W}, 1\ns_add_u32 s{S_MT0}, s{S_MT0}, s27")
    k.e(f"s_lshl_b32 s{S_MT}, s{S_RB64}, 2\ns_add_u32 s{S_MT}, s{S_MT}, s{S_W}")
    k.e(f"s_mov_b32 s{S_L}, 0\ns_mov_b32 s{S_E1}, 1\ns_mov_b32 s{S_EP}, 0")
    k.e(f"s_mul_i32 s{S_W7}, s{S_W}, 7168")
    lin(k, S_WGU, WS["WGU"][0], [(S_CG, 280 * 1024), (S_W7, 1)])
    k.e("s_waitcnt lgkmcnt(0)")
    k.srd(SRD, 10, WS_END)
    k.srd(SRDO, 36, S * D * 2)
    k.srd(SRDQ, 10, WS_END)
    pstamp(k, 0)
    for f in wq_dma(k, 0, SRD):
        f()
    lin(k, S_FCR, FC_OFF, [(S_CG, FST)])
    lin(k, S_FCW, 0, [(S_FCR, 1), (S_RB, 4)])
    lin(k, S_FLR, FL_OFF, [(S_RB, FST)])
    lin(k, S_FLW, 0, [(S_FLR, 1), (S_CG, 4)])
    lin(k, S_WD, WS["WD"][0], [(S_CG8, 56 * 5120), (S_W, 70 * 1024)])
    lin(k, S_WO, WS["WO"][0], [(S_CG8, 102400), (S_W, 25600)])
    xio_setup(k)
    xio(k, WS["X"][0])
    k.vm(f"buffer_load_dwordx4 v[{RES}:{RES+3}], v5, {R_}, s44 offen", "res")
    k.vm(f"buffer_load_dwordx4 v[{RES+4}:{RES+7}], v5, {R_}, s44 offen offset:1024", "res")
    k.vm(f"buffer_load_dwordx2 v[{RES+8}:{RES+9}], v6, {R_}, s45 offen", "res")
    x_setup(k, WS["X"][0])
    o_setup(k)
    h_setup(k)
    red_setup(k)
    k.label("LOOP")
    k.vmq = []; k.dsq = []; k.ds_done = -1
    p1(k)
    p2(k)
    p3(k)
    k.e(f"s_cmp_eq_u32 s{S_L}, 1\ns_cselect_b32 s{SRDQ+2}, 0, s{SRD+2}")
    p4(k)
    if PROF:
        k.e("v_mov_b32 v30, v31")
    k.e("s_branch LOOP")
    k.label("FINAL")
    final_store(k)
    pstamp(k, 18)
    if PROF:
        k.e("s_memrealtime s[98:99]\ns_waitcnt lgkmcnt(0)\nv_writelane_b32 v31, s98, 63")
        lin(k, 46, WS["PROF"][0], [(2, 4 * 512), (S_W, 512)])
        k.e("v_lshlrev_b32 v10, 2, v2")
        k.e(f"buffer_store_dword v30, v10, {R_}, s46 offen\nbuffer_store_dword v31, v10, {R_}, s46 offen offset:256")
    k.e("s_waitcnt vmcnt(0)")
    k.label("MAIN_END")
    k.e("s_endpgm")
    return (k, 256, 256, 256, 163840, 256)
```

```python
from asmlib import Kern, kernel_text

S, D, H, DH, F = 2048, 640, 32, 20, 1728
KB = 1024

def _al(x, a=4096):
    return (x + a - 1) // a * a
WS = {}
_off = 0
def _alloc(name, size):
    global _off
    WS[name] = (_off, size)
    _off = _al(_off + size)
_alloc("WQ", 16 * 20 * 8 * KB)
_alloc("WO", 8 * 20 * 5 * KB)
_alloc("WGU", 16 * 20 * 14 * KB)
_alloc("WD", 8 * 56 * 5 * KB)
_alloc("CSQ", 1920 * 4)
_alloc("CSG", 1728 * 4)
_alloc("CSU", 1728 * 4)
XS = 128 * 20 * KB
STS = 128 * KB
HS = 128 * 56 * KB
KVB = 3584
KVL = 16 * KVB
_alloc("X", 4 * XS)
_alloc("ST", 4 * STS)
_alloc("O", 2 * XS)
SYNC_IN_KVZ = 2 * KVL
_alloc("KVZ", 9 * 4 * 4096)
_alloc("H", 2 * HS)
for i in range(4):
    WS[f"X{i}"] = (WS["X"][0] + i * XS, XS)
    WS[f"ST{i}"] = (WS["ST"][0] + i * STS, STS)
for i in range(2):
    WS[f"O{i}"] = (WS["O"][0] + i * XS, XS)
    WS[f"H{i}"] = (WS["H"][0] + i * HS, HS)
WS["KV"] = (WS["KVZ"][0], 2 * KVL)
SYNC_OFF = WS["KVZ"][0] + SYNC_IN_KVZ
FST = 256
FC_OFF = SYNC_OFF
FL_OFF = FC_OFF + 16 * FST
assert SYNC_IN_KVZ + 32 * FST <= WS["KVZ"][1]
_alloc("PROF", 256 * 4 * 2 * 256)
WS_END = _off

ARG = dict(x=0, wqkv=8, wo=16, bx=24, wg=32, wu=40, wd=48, out=56, dbg=64, ws=72)
OOB = 0x40000000

TRANS_ = ("v_exp_f32", "v_rcp_f32", "v_rsq_f32")
SLOT = dict(v=1, t=2, d=1, m=2, x=3, w=5, P=6)
def icls(t):
    if t.startswith("v_mfma"): return "M"
    if t.startswith(TRANS_): return "t"
    if t.startswith(("v_pk_", "v_dot2")): return "P"
    if t.startswith("v_"): return "v"
    if t.startswith("ds_write_b128"): return "w"
    if t.startswith("ds_"): return "d"
    if t.startswith("buffer_store"): return "x"
    if t.startswith("buffer_"): return "m"
    return "s"
def seq_end(cur, seq):
    for c in seq:
        if c == "M": cur = 4
        elif c == "s": cur += 4
        else: cur = max(cur, 8) + 4 * SLOT[c]
    return cur

class K(Kern):
    def __init__(self, name):
        super().__init__(name)
        self.vmq = []
        self.dsq = []
        self.ds_done = -1
        self.cur = 0
        self.over = 0
        self.n = 0
        self.t = 0
    def e(self, text):
        super().e(text)
        for ln in text.split("\n"):
            ln = ln.strip()
            if not ln or ln.startswith(";") or (ln.endswith(":") and " " not in ln):
                continue
            c = icls(ln)
            self.n += 1
            if c == "M":
                self.over += max(0, self.cur - 16)
                self.t += max(16, self.cur)
            self.cur = seq_end(self.cur, [c])
    def wait_both(self, ds_tag=None, vm_tag=None):
        parts = []
        if vm_tag is not None:
            parts.append(f"vmcnt({min(self.vm_after(vm_tag), 63)})")
        if ds_tag is not None:
            idx = max(i for i, t in enumerate(self.dsq) if t == ds_tag)
            n = min(len(self.dsq) - 1 - idx, 15)
            if idx > self.ds_done:
                parts.append(f"lgkmcnt({n})")
                self.ds_done = len(self.dsq) - 1 - n
        if parts:
            self.e("s_waitcnt " + " ".join(parts))
    def vm(self, text, tag=None):
        self.e(text)
        self.vmq.append(tag)
    def vm_after(self, tag):
        idx = max(i for i, t in enumerate(self.vmq) if t == tag)
        return len(self.vmq) - 1 - idx
    def wait_vm(self, tag, extra=""):
        n = min(self.vm_after(tag), 63)
        key = ("vm", n)
        self.e(f"s_waitcnt vmcnt({n}) {extra}".strip())
    def ds(self, text, tag=None):
        self.e(text)
        self.dsq.append(tag)
    def wait_ds(self, tag):
        idx = max(i for i, t in enumerate(self.dsq) if t == tag)
        n = min(len(self.dsq) - 1 - idx, 15)
        if idx <= self.ds_done:
            return
        self.e(f"s_waitcnt lgkmcnt({n})")
        self.ds_done = len(self.dsq) - 1 - n
    def ds_drain(self):
        self.e("s_waitcnt lgkmcnt(0)")
        self.ds_done = len(self.dsq) - 1
    def srd_l(self, d, off, size, stride=0, tmp=73):
        if stride:
            self.e(f"s_mul_i32 s{tmp}, s9, 0x{stride:x}")
            self.e(f"s_add_u32 s{tmp}, s{tmp}, 0x{off:x}")
            self.e(f"s_add_u32 s{d}, s10, s{tmp}")
        else:
            self.e(f"s_add_u32 s{d}, s10, 0x{off:x}")
        self.e(f"s_addc_u32 s{d+1}, s11, 0")
        self.e(f"s_mov_b32 s{d+2}, 0x{size:x}")
        self.e(f"s_mov_b32 s{d+3}, 0x00020000")
    def srd_add(self, d, sreg):
        self.e(f"s_add_u32 s{d}, s{d}, s{sreg}")
        self.e(f"s_addc_u32 s{d+1}, s{d+1}, 0")
    def srd(self, d, blo, size, off=0):
        if off:
            self.e(f"s_add_u32 s{d}, s{blo}, 0x{off:x}")
            self.e(f"s_addc_u32 s{d+1}, s{blo+1}, 0")
        else:
            self.e(f"s_mov_b32 s{d}, s{blo}")
            self.e(f"s_mov_b32 s{d+1}, s{blo+1}")
        self.e(f"s_mov_b32 s{d+2}, 0x{size:x}")
        self.e(f"s_mov_b32 s{d+3}, 0x00020000")
    def sel(self, d, a, b):
        self.e(f"s_mov_b32 s{d}, {b}")
        self.e(f"s_cselect_b32 s{d}, {a}, s{d}")
    def ldarg(self, d, name):
        self.e(f"s_load_dwordx2 s[{d}:{d+1}], s[0:1], {ARG[name]}")

def vr(b, n=1, p="v"):
    return f"{p}{b}" if n == 1 else f"{p}[{b}:{b+n-1}]"
def ar(b, n=1):
    return vr(b, n, "a")
def sr(b, n=1):
    return vr(b, n, "s")

import os
PROF = bool(int(os.environ.get("PROF", "0")))
def stamp(k, i, real=False):
    if not PROF:
        return
    k.e(f"{'s_memrealtime' if real else 's_memtime'} s[{80+2*i}:{81+2*i}]")
    k.e("s_waitcnt lgkmcnt(0)")
def stamp_flush(k, kidx, n, ws_pair):
    if not PROF:
        return
    k.e("s_waitcnt vmcnt(0)")
    stamp(k, n)
    stamp(k, n + 1, real=True)
    k.srd(76, ws_pair, WS["PROF"][1], WS["PROF"][0])
    k.e(f"s_lshl_b32 s74, s2, 2\ns_add_u32 s74, s74, s3\ns_add_u32 s74, s74, {kidx*2048}\ns_lshl_b32 s74, s74, 6")
    k.e("s_mov_b64 exec, 1")
    k.e("v_mov_b32 v1, 0")
    for i in range(n + 2):
        k.e(f"v_mov_b32 v2, s{80+2*i}")
        k.e(f"buffer_store_dword v2, v1, s[76:79], s74 offen offset:{4*i}")
```

```python
from common import *

B_J6A = 0
B_J6B = B_J6A + 30
B_J5 = B_J6B + 54
B_J7 = B_J5 + 128
B_J1 = B_J7 + 9
B_J2 = B_J1 + 80
B_J3 = B_J2 + 160
B_J4 = B_J3 + 40
K0_GRID = B_J4 + 112
SC = os.environ.get("K0SC", "")
if SC: SC = " " + SC
LDM = os.environ.get("K0LD", "")
if LDM: LDM = " " + LDM
WLDS = 9216

def pack(k, ppr, nq, stride, col, generic=False):
    M = -(-65536 // ppr)
    k.e(f"s_mov_b32 s45, {stride}")
    for q in range(nq):
        k.e(f"v_add_u32 v6, {64*q}, v2")
        k.e(f"v_mul_u32_u24 v7, {M}, v6\nv_lshrrev_b32 v7, 16, v7")
        k.e(f"v_mul_u32_u24 v8, {ppr}, v7\nv_sub_u32 v8, v6, v8")
        a = 16 + q
        col(8, 9)
        if generic:
            k.e("v_lshrrev_b32 v10, 4, v7\nv_mul_u32_u24 v10, s27, v10")
            k.e("v_bfe_u32 v11, v7, 2, 2\nv_mad_u32_u24 v10, v11, s36, v10")
            k.e("v_and_b32 v7, 3, v7\nv_add_u32 v7, v7, v10")
            k.e(f"v_mad_u32_u24 v{a}, v7, s45, v9")
            k.e(f"v_cmp_gt_u32 vcc, s37, v11\nv_cndmask_b32 v{a}, v15, v{a}, vcc")
        else:
            k.e(f"v_mad_u32_u24 v{a}, v7, s45, v9")
        k.e(f"s_add_u32 m0, s46, {1024*q}")
        k.vm(f"buffer_load_dwordx4 v{a}, s[8:11], s47 offen{LDM} lds", "ld")
    k.e(f"v_lshrrev_b32 v6, 2, v2\nv_mul_u32_u24 v6, {16*ppr}, v6\nv_and_b32 v7, 3, v2\nv_lshl_add_u32 v6, v7, 3, v6\nv_add_u32 v6, s46, v6")

def unpack(k, ppr, ntiles, areg, toff):
    k.e("s_waitcnt vmcnt(0)")
    for t in range(ntiles):
        for h in range(2):
            k.ds(f"ds_read_b64_tr_b16 v[{32+4*t+2*h}:{33+4*t+2*h}], v{areg(t)} offset:{h*16*16*ppr + toff(t)}", f"t{t}")

def stores(k, ntiles, split, mask=None):
    for t in range(ntiles):
        k.wait_ds(f"t{t}")
        if mask:
            mask(t)
        if t >= split:
            so, lo = "s44", (t - split) * 1024
        else:
            so, lo = "s24", t * 1024
        k.vm(f"buffer_store_dwordx4 v[{32+4*t}:{35+4*t}], v5, s[12:15], {so} offen offset:{lo}{SC}", "st")

def build_k0():
    k = K("k0_kernel")
    k.e(f"s_cmp_ge_u32 s2, {K0_GRID}")
    k.e("s_cbranch_scc1 K0_END")
    k.ldarg(4, "ws")
    k.e("v_lshrrev_b32 v1, 6, v0")
    k.e("v_and_b32 v2, 63, v0")
    k.e("v_readfirstlane_b32 s3, v1")
    k.e("v_lshrrev_b32 v3, 4, v2")
    k.e("v_and_b32 v4, 15, v2")
    k.e("v_lshlrev_b32 v5, 4, v2")
    k.e(f"v_mov_b32 v15, 0x{OOB:x}")
    k.e(f"s_mul_i32 s46, s3, {WLDS}")
    emit_jobs(k, "s2")
    k.label("K0_END")
    k.e("s_endpgm")
    return k, 128, 0, K0_GRID, 4 * WLDS

def emit_jobs(k, J):
    only = os.environ.get("K0ONLY")
    if only:
        lo, hi = [int(x) for x in only.split(",")]
        k.e(f"s_cmp_lt_u32 {J}, {lo}\ns_cbranch_scc1 K0_END\ns_cmp_ge_u32 {J}, {hi}\ns_cbranch_scc1 K0_END")
    k.e(f"s_cmp_ge_u32 {J}, {B_J3}\ns_cbranch_scc1 K0_J34")
    k.e(f"s_cmp_ge_u32 {J}, {B_J2}\ns_cbranch_scc1 K0_J2")
    k.e(f"s_cmp_ge_u32 {J}, {B_J1}\ns_cbranch_scc1 K0_J1")
    k.e(f"s_cmp_ge_u32 {J}, {B_J7}\ns_cbranch_scc1 K0_J7")
    k.e(f"s_cmp_ge_u32 {J}, {B_J5}\ns_cbranch_scc1 K0_J5")
    k.e("s_branch K0_J6")

    k.label("K0_J1")
    k.vmq = []; k.dsq = []; k.ds_done = -1
    k.ldarg(6, "wqkv")
    k.e(f"s_sub_u32 s29, {J}, {B_J1}")
    k.e("s_and_b32 s30, s29, 3\ns_lshr_b32 s29, s29, 2")
    k.e("s_lshl_b32 s30, s30, 2\ns_add_u32 s30, s30, s3")
    k.e(f"s_mul_i32 s47, s29, {32*3840}")
    k.e("s_mul_i32 s31, s30, 80")
    k.e("s_mul_i32 s24, s30, 163840\ns_mul_i32 s44, s29, 3072\ns_add_u32 s44, s44, s24\ns_add_u32 s44, s44, 102400")
    k.e("s_mul_i32 s25, s29, 5120\ns_add_u32 s24, s24, s25")
    k.e("s_mov_b32 s32, 2480\ns_mov_b32 s33, -160")
    k.e("s_waitcnt lgkmcnt(0)")
    k.srd(8, 6, 640 * 1920 * 2)
    k.srd(12, 4, WS["WQ"][1], WS["WQ"][0])
    def col1(p, o):
        k.e(f"v_mov_b32 v12, s33\nv_mov_b32 v13, s32")
        k.e(f"v_cmp_gt_u32 vcc, 10, v{p}\nv_cndmask_b32 v12, v12, v13, vcc")
        k.e(f"v_mov_b32 v13, 1280\nv_cmp_gt_u32 vcc, 5, v{p}\nv_cndmask_b32 v12, v12, v13, vcc")
        k.e(f"v_lshl_add_u32 v{o}, v{p}, 4, v12\nv_add_u32 v{o}, s31, v{o}")
        k.e(f"v_cmp_gt_u32 vcc, 15, v{p}\nv_cndmask_b32 v{o}, v15, v{o}, vcc")
    pack(k, 18, 9, 3840, col1)
    k.e("s_add_u32 s25, s24, 4096")
    k.e("v_cmp_gt_u32 s[34:35], 8, v4")
    unpack(k, 18, 8, lambda t: 6, lambda t: 32 * t)
    for t in range(8):
        k.wait_ds(f"t{t}")
        if t == 7:
            for r in range(4):
                k.e(f"v_cndmask_b32 v{32+4*t+r}, 0, v{32+4*t+r}, s[34:35]")
        so, lo = ("s24", t * 1024) if t < 4 else (("s25", 0) if t == 4 else ("s44", (t - 5) * 1024))
        k.vm(f"buffer_store_dwordx4 v[{32+4*t}:{35+4*t}], v5, s[12:15], {so} offen offset:{lo}{SC}", "st")
    k.e("s_branch K0_END")

    k.label("K0_J2")
    k.vmq = []; k.dsq = []; k.ds_done = -1
    k.e(f"s_sub_u32 s29, {J}, {B_J2}")
    k.e("s_and_b32 s31, s29, 1")
    k.e("s_lshl_b32 s28, s31, 3")
    k.e("s_add_u32 s6, s0, s28\ns_addc_u32 s7, s1, 0")
    k.e(f"s_load_dwordx2 s[6:7], s[6:7], {ARG['wg']}")
    k.e("s_lshr_b32 s30, s29, 1\ns_and_b32 s30, s30, 3")
    k.e("s_lshl_b32 s30, s30, 2\ns_add_u32 s30, s30, s3")
    k.e("s_lshr_b32 s29, s29, 3")
    k.e(f"s_mul_i32 s47, s29, {32*3456}")
    k.e("s_mul_i32 s32, s30, 216")
    k.e("s_mul_i32 s24, s30, 280")
    k.e("s_lshl_b32 s33, s31, 1\ns_add_u32 s33, s33, s24")
    k.e("s_lshl_b32 s44, s29, 2\ns_add_u32 s44, s44, s33\ns_add_u32 s44, s44, 120\ns_lshl_b32 s44, s44, 10")
    k.e(f"s_add_u32 s25, s44, {80*1024}")
    k.e("s_mul_i32 s26, s29, 6\ns_add_u32 s24, s24, s26\ns_add_u32 s24, s24, s31\ns_add_u32 s24, s24, 4\ns_lshl_b32 s24, s24, 10")
    k.e("s_add_u32 s26, s26, s33\ns_lshl_b32 s26, s26, 10")
    k.e("s_waitcnt lgkmcnt(0)")
    k.srd(8, 6, 640 * 1728 * 2)
    k.srd(12, 4, WS["WGU"][1], WS["WGU"][0])
    def col2(p, o):
        k.e(f"v_lshlrev_b32 v{o}, 4, v{p}\nv_min_u32 v{o}, 200, v{o}\nv_add_u32 v{o}, s32, v{o}")
    pack(k, 14, 7, 3456, col2)
    k.e("v_and_b32 v7, 3, v2\nv_cmp_eq_u32 vcc, 2, v7\nv_add_u32 v8, 8, v6\nv_cndmask_b32 v7, v6, v8, vcc")
    k.e("v_cmp_gt_u32 s[34:35], 12, v4")
    unpack(k, 14, 7, lambda t: 7 if t == 6 else 6, lambda t: 32 * t)
    def mask2(t):
        if t == 6:
            for r in range(4):
                k.e(f"v_cndmask_b32 v{32+4*t+r}, 0, v{32+4*t+r}, s[34:35]")
    for t in range(7):
        k.wait_ds(f"t{t}")
        mask2(t)
        so = ("s26", "s26", "s44", "s44", "s25", "s25", "s24")[t]
        k.vm(f"buffer_store_dwordx4 v[{32+4*t}:{35+4*t}], v5, s[12:15], {so} offen offset:{(t & 1) * 1024 if t < 6 else 0}{SC}", "st")
    k.e("s_branch K0_END")

    k.label("K0_J34")
    k.vmq = []; k.dsq = []; k.ds_done = -1
    k.e(f"s_cmp_ge_u32 {J}, {B_J4}\ns_cbranch_scc1 K0_J4")
    k.ldarg(6, "wo")
    k.e(f"s_sub_u32 s29, {J}, {B_J3}")
    k.e("s_and_b32 s30, s29, 1\ns_lshl_b32 s30, s30, 2\ns_add_u32 s30, s30, s3")
    k.e("s_lshr_b32 s29, s29, 1")
    k.e("s_mul_i32 s31, s29, 52\ns_lshr_b32 s31, s31, 8")
    k.e("s_mul_i32 s32, s31, 5\ns_sub_u32 s32, s29, s32")
    k.e("s_mul_i32 s33, s31, 160")
    k.e("s_cmp_gt_u32 s32, 2\ns_cselect_b32 s34, 1, 0\ns_sub_u32 s34, s32, s34\ns_mul_i32 s34, s34, 40\ns_add_u32 s26, s33, s34")
    k.e("s_add_u32 s35, s33, 16")
    k.e("s_cmp_eq_u32 s32, 2")
    k.e("s_cselect_b32 s26, s35, s26\ns_mov_b32 s27, 20\ns_cselect_b32 s36, 40, 4")
    k.e("s_mov_b32 s37, 4")
    k.e("s_mul_i32 s24, s30, 20\ns_add_u32 s24, s24, s29\ns_mul_i32 s24, s24, 5120")
    k.e("s_waitcnt lgkmcnt(0)")
    k.srd(8, 6, 640 * 640 * 2)
    k.srd(12, 4, WS["WO"][1], WS["WO"][0])
    k.e("s_branch K0_J34C")
    k.label("K0_J4")
    k.ldarg(6, "wd")
    k.e(f"s_sub_u32 s29, {J}, {B_J4}")
    k.e("s_and_b32 s30, s29, 1\ns_lshl_b32 s30, s30, 2\ns_add_u32 s30, s30, s3")
    k.e("s_lshr_b32 s29, s29, 1")
    k.e("s_mul_i32 s31, s29, 37\ns_lshr_b32 s31, s31, 8")
    k.e("s_mul_i32 s32, s31, 7\ns_sub_u32 s32, s29, s32")
    k.e("s_mul_i32 s33, s31, 216")
    k.e("s_cmp_ge_u32 s32, 3\ns_cselect_b32 s34, 12, 0\ns_lshl_b32 s35, s32, 5\ns_add_u32 s26, s33, s35\ns_add_u32 s26, s26, s34")
    k.e("s_add_u32 s35, s33, 96")
    k.e("s_cmp_eq_u32 s32, 6")
    k.e("s_cselect_b32 s26, s35, s26\ns_cselect_b32 s27, 108, 16\ns_cselect_b32 s37, 3, 4")
    k.e("s_mov_b32 s36, 4")
    k.e("s_mul_i32 s24, s30, 56\ns_add_u32 s24, s24, s29\ns_mul_i32 s24, s24, 5120")
    k.e("s_waitcnt lgkmcnt(0)")
    k.srd(8, 6, 1728 * 640 * 2)
    k.srd(12, 4, WS["WD"][1], WS["WD"][0])
    k.label("K0_J34C")
    k.e("s_mul_i32 s47, s26, 1280")
    k.e("s_mul_i32 s38, s30, 160")
    def col3(p, o):
        k.e(f"v_lshlrev_b32 v{o}, 4, v{p}\nv_add_u32 v{o}, s38, v{o}")
    pack(k, 10, 5, 1280, col3, generic=True)
    k.e("s_and_b32 s39, s30, 1\ns_cmp_eq_u32 s39, 1")
    for t in range(5):
        k.sel(39, 32 * ((t + 1) % 5), 32 * t)
        k.e(f"v_add_u32 v{8+t}, s39, v6")
    k.e("s_add_u32 s44, s24, 4096")
    k.e("v_cmp_gt_u32 s[34:35], s37, v3")
    unpack(k, 10, 5, lambda t: 8 + t, lambda t: 0)
    def mask3(t):
        for r in range(4):
            k.e(f"v_cndmask_b32 v{32+4*t+r}, 0, v{32+4*t+r}, s[34:35]")
    stores(k, 5, 4, mask3)
    k.e("s_branch K0_END")

    k.label("K0_J5")
    k.vmq = []
    k.ldarg(6, "x")
    k.e(f"s_sub_u32 s29, {J}, {B_J5}")
    k.e("s_mul_i32 s30, s29, 20480")
    k.e("s_mul_i32 s31, s3, 320\ns_add_u32 s31, s31, s30")
    k.e("s_mul_i32 s32, s3, 5120\ns_add_u32 s32, s32, s30")
    k.e("s_add_u32 s34, s32, 4096")
    k.e("v_mul_u32_u24 v6, 1280, v4")
    k.e("v_lshl_add_u32 v6, v3, 3, v6")
    k.e("v_lshlrev_b32 v7, 3, v2")
    k.e("s_waitcnt lgkmcnt(0)")
    k.srd(8, 6, S * D * 2)
    k.srd(12, 4, WS["X"][1] // 4, WS["X"][0])
    k.srd(40, 4, WS["ST"][1] // 4, WS["ST"][0])
    L = 16
    for nt in range(10):
        k.vm(f"buffer_load_dwordx2 v[{L+2*nt}:{L+2*nt+1}], v6, s[8:11], s31 offen offset:{32*nt}", f"n{nt}")
    k.e("v_mov_b32 v8, 0\nv_mov_b32 v9, 0\nv_mov_b32 v10, 0\nv_mov_b32 v11, 0")
    k.e("s_mov_b32 s33, 0x3f803f80")
    k.e("v_lshlrev_b32 v12, 7, v3\nv_lshl_add_u32 v12, v4, 3, v12")
    k.e("v_cmp_gt_u32 vcc, 2, v3\nv_cndmask_b32 v12, v15, v12, vcc")
    k.e("s_lshl_b32 s35, s29, 10\ns_lshl_b32 s36, s3, 8\ns_add_u32 s35, s35, s36")
    for ks in range(5):
        k.wait_vm(f"n{2*ks+1}")
        b = L + 4 * ks
        if ks == 2:
            k.vm(f"buffer_store_dwordx2 v[{b}:{b+1}], v7, s[12:15], s32 offen offset:2048{SC}", "st")
            k.vm(f"buffer_store_dwordx2 v[{b+2}:{b+3}], v7, s[12:15], s32 offen offset:2560{SC}", "st")
        elif ks < 4:
            k.vm(f"buffer_store_dwordx4 v[{b}:{b+3}], v5, s[12:15], s32 offen offset:{ks*1024}{SC}", "st")
        else:
            k.vm(f"buffer_store_dwordx4 v[{b}:{b+3}], v5, s[12:15], s34 offen{SC}", "st")
        for q in range(4):
            k.e(f"v_dot2_f32_bf16 v{8+(q&1)}, v{b+q}, s33, v{8+(q&1)}")
            k.e(f"v_dot2_f32_bf16 v{10+(q&1)}, v{b+q}, v{b+q}, v{10+(q&1)}")
    k.e("v_add_f32 v8, v8, v9\nv_add_f32 v10, v10, v11")
    for sw in ("v_permlane16_swap_b32", "v_permlane32_swap_b32"):
        k.e("v_mov_b32 v9, v8\nv_mov_b32 v11, v10")
        k.e(f"{sw} v8, v9\n{sw} v10, v11")
        k.e("v_add_f32 v8, v8, v9\nv_add_f32 v10, v10, v11")
    k.e("v_cmp_eq_u32 vcc, 0, v3")
    k.e("v_cndmask_b32 v8, 0, v8, vcc\nv_cndmask_b32 v9, 0, v10, vcc")
    k.vm(f"buffer_store_dwordx2 v[8:9], v12, s[40:43], s35 offen{SC}", "st")
    k.e("s_branch K0_END")

    k.label("K0_J6")
    k.vmq = []
    k.e(f"s_cmp_ge_u32 {J}, {B_J6B}\ns_cbranch_scc1 K0_J6B")
    k.e(f"s_sub_u32 s29, {J}, {B_J6A}")
    k.ldarg(6, "wqkv")
    k.e("s_mov_b32 s30, 3840")
    k.e("s_waitcnt lgkmcnt(0)")
    k.srd(8, 6, 640 * 1920 * 2)
    k.srd(12, 4, WS["CSQ"][1], WS["CSQ"][0])
    k.e("s_branch K0_J6C")
    k.label("K0_J6B")
    k.e(f"s_sub_u32 s29, {J}, {B_J6B}")
    k.e("s_cmp_ge_u32 s29, 27\ns_cbranch_scc1 K0_J6U")
    k.ldarg(6, "wg")
    k.e("s_waitcnt lgkmcnt(0)")
    k.srd(12, 4, WS["CSG"][1], WS["CSG"][0])
    k.e("s_branch K0_J6D")
    k.label("K0_J6U")
    k.ldarg(6, "wu")
    k.e("s_sub_u32 s29, s29, 27")
    k.e("s_waitcnt lgkmcnt(0)")
    k.srd(12, 4, WS["CSU"][1], WS["CSU"][0])
    k.label("K0_J6D")
    k.e("s_mov_b32 s30, 3456")
    k.srd(8, 6, 640 * 1728 * 2)
    k.label("K0_J6C")
    k.e("v_lshrrev_b32 v6, 3, v2\nv_mul_lo_u32 v6, v6, s30")
    k.e("v_and_b32 v7, 7, v2\nv_lshl_add_u32 v6, v7, 4, v6")
    k.e("s_lshl_b32 s31, s29, 7")
    k.e("v_add_u32 v6, s31, v6")
    k.e("s_mul_i32 s32, s3, 160\ns_mul_i32 s32, s32, s30")
    k.e("s_lshl_b32 s33, s30, 3")
    L = 24
    for it in range(20):
        k.vm(f"buffer_load_dwordx4 v[{L+4*it}:{L+4*it+3}], v6, s[8:11], s32 offen", f"r{it}")
        k.e("s_add_u32 s32, s32, s33")
    for q in range(8):
        k.e(f"v_mov_b32 v{8+q}, 0")
    k.e("s_mov_b32 s34, 0x00003f80\ns_mov_b32 s35, 0x3f800000")
    for it in range(20):
        k.wait_vm(f"r{it}")
        for q in range(4):
            k.e(f"v_dot2_f32_bf16 v{8+2*q}, v{L+4*it+q}, s34, v{8+2*q}")
            k.e(f"v_dot2_f32_bf16 v{9+2*q}, v{L+4*it+q}, s35, v{9+2*q}")
    for q in range(8):
        k.e(f"v_add_f32_dpp v{8+q}, v{8+q}, v{8+q} row_ror:8 row_mask:0xf bank_mask:0xf")
    for sw in ("v_permlane16_swap_b32", "v_permlane32_swap_b32"):
        for q in range(8):
            k.e(f"v_mov_b32 v{16+q}, v{8+q}")
        for q in range(8):
            k.e(f"{sw} v{8+q}, v{16+q}")
        for q in range(8):
            k.e(f"v_add_f32 v{8+q}, v{8+q}, v{16+q}")
    k.e("s_lshl_b32 s36, s3, 8")
    k.e("v_lshlrev_b32 v16, 5, v7\nv_add_u32 v16, s36, v16")
    k.e("ds_write_b128 v16, v[8:11]\nds_write_b128 v16, v[12:15] offset:16")
    k.e("s_waitcnt lgkmcnt(0)\ns_barrier")
    k.e("v_lshlrev_b32 v17, 2, v2")
    k.e("ds_read_b32 v18, v17\nds_read_b32 v19, v17 offset:256\nds_read_b32 v20, v17 offset:512\nds_read_b32 v21, v17 offset:768")
    k.e("s_waitcnt lgkmcnt(0)")
    k.e("v_add_f32 v18, v18, v19\nv_add_f32 v20, v20, v21\nv_add_f32 v18, v18, v20")
    k.e("s_lshl_b32 s31, s29, 8")
    k.vm(f"buffer_store_dword v18, v17, s[12:15], s31 offen{SC}", "st")
    k.e("s_branch K0_END")

    k.label("K0_J7")
    k.e(f"s_sub_u32 s29, {J}, {B_J7}\ns_lshl_b32 s29, s29, 2\ns_add_u32 s29, s29, s3\ns_lshl_b32 s29, s29, 12")
    k.e("s_waitcnt lgkmcnt(0)")
    k.srd(12, 4, WS["KVZ"][1], WS["KVZ"][0])
    k.e("v_mov_b32 v8, 0\nv_mov_b32 v9, 0\nv_mov_b32 v10, 0\nv_mov_b32 v11, 0")
    for q in range(4):
        k.e(f"buffer_store_dwordx4 v[8:11], v5, s[12:15], s29 offen offset:{q*1024}{SC}")
```

```python
from common import *
import re

LOG2E = 0x3fb8aa3b
EPS6 = 0x358637bd
EPS5 = 0x3727c5ac
INV640 = 0x3acccccd
NAME = "main_kernel"

CFG = dict(PDX1=10, PDX3=8, KSIG=8, WOP1=12, EPA_END=34, HAF=38, HBP=4, WD2B=0, PDO=2, WD2R=4, XR3=1, WA1=1, BUD=16, XR1=2, P1E=19, RA=4, XS3=2, DS3=1, B4=187, B5=244, WV0=122, WD2A=2, WD2D=8, HP1I=270, HE=1, HF3=2, HP2=3, HP3=7, WQP=9, PFA=1, PFB=1, PFC=130)
for _k in list(CFG):
    if os.environ.get(_k):
        CFG[_k] = int(os.environ[_k])

S_W, S_RB, S_CG, S_RB64, S_CG8, S_L = 3, 4, 5, 6, 7, 9
SRD = 12
SRDO = 16
S_MT0, S_MT = 20, 21
S_E1, S_EP = 22, 23
S_WD, S_WO = 48, 49
S_W7, S_WGU = 51, 52
SRDQ = 60
S_FCW, S_FCR, S_FLW, S_FLR = 76, 77, 78, 79
S_HB = 82
RES = 16
STF = " sc1"
LDF = " sc1"
R_ = f"s[{SRD}:{SRD+3}]"

LDS_B = 102400
KVR = 86016
CH = 28672; NSLOT = 5
CSL = 143360
KO = [0, 3, 7, 10, 6, 13, 1, 4, 8, 11, 2, 5, 9, 12]

_lab = [0]
def newlab(p):
    _lab[0] += 1
    return f"{p}_{_lab[0]}"

def lin(k, dst, const, terms, tmp=8):
    first = True
    for (r, m) in terms:
        if first:
            if m == 1:
                k.e(f"s_mov_b32 s{dst}, s{r}")
            else:
                k.e(f"s_mul_i32 s{dst}, s{r}, 0x{m:x}")
        else:
            if m == 1:
                k.e(f"s_add_u32 s{dst}, s{dst}, s{r}")
            else:
                k.e(f"s_mul_i32 s{tmp}, s{r}, 0x{m:x}\ns_add_u32 s{dst}, s{dst}, s{tmp}")
        first = False
    if first:
        k.e(f"s_mov_b32 s{dst}, 0x{const:x}")
    elif const:
        k.e(f"s_add_u32 s{dst}, s{dst}, 0x{const:x}")

def pstamp(k, idx):
    if not PROF:
        return
    k.e("s_memrealtime s[98:99]" if os.environ.get("PROFRT") else "s_memtime s[98:99]")
    k.ds_drain()
    k.e(f"v_writelane_b32 v31, s98, {idx}")

def lds_addr(off):
    return (5, 7, 8)[off >> 16], off & 0xffff

def w0_begin(k):
    L = newlab("W0")
    k.e(f"s_cmp_lg_u32 s{S_W}, 0\ns_cbranch_scc1 {L}")
    return L

def flag_raw(k, s_off):
    k.e("v_mov_b32 v26, 1")
    k.e(f"buffer_atomic_add v26, v28, {R_}, s{s_off} offen sc1")

def flag(k, s_off, s_ep=None):
    L = w0_begin(k)
    flag_raw(k, s_off)
    k.label(L)
    if s_ep is not None:
        k.e(f"s_add_u32 s{s_ep}, s{s_ep}, 1")

def poll_raw(k, s_off, s_tgt):
    L = newlab("PL"); D = newlab("PD")
    k.e("s_mov_b32 s74, 0")
    k.label(L)
    k.e(f"buffer_load_dword v26, v29, {R_}, s{s_off} offen sc1")
    k.e("s_waitcnt vmcnt(0)")
    k.e(f"v_cmp_gt_u32 vcc, s{s_tgt}, v26\ns_cmp_eq_u64 vcc, 0\ns_cbranch_scc1 {D}")
    k.e(f"s_add_u32 s74, s74, 1\ns_cmp_lt_u32 s74, 0x40000\ns_cbranch_scc1 {L}")
    k.label(D)

def poll(k, s_off, s_tgt):
    L = w0_begin(k)
    poll_raw(k, s_off, s_tgt)
    k.label(L)
    k.e("s_barrier")

def poll_issue(k, s_off):
    L = w0_begin(k)
    k.e(f"buffer_load_dword v27, v29, {R_}, s{s_off} offen sc1")
    k.label(L)
    k.poll_pos = len(k.vmq)

def poll_check(k, s_off, s_tgt):
    L = w0_begin(k)
    k.e(f"s_waitcnt vmcnt({min(len(k.vmq) - k.poll_pos, 63)})")
    k.e(f"v_cmp_gt_u32 vcc, s{s_tgt}, v27\ns_cmp_eq_u64 vcc, 0\ns_cbranch_scc1 {L}")
    poll_raw(k, s_off, s_tgt)
    k.label(L)
    k.e("s_barrier")

class Rec:
    def __init__(self):
        self.L = []
    def e(self, text):
        for ln in text.split("\n"):
            ln = ln.strip()
            if ln:
                self.L.append(("e", ln, None))
    def ds(self, text, tag=None):
        self.L.append(("ds", text, tag))
    def vm(self, text, tag=None):
        self.L.append(("vm", text, tag))
    def wait_ds(self, tag):
        self.L.append(("wds", "wait", tag))
    def wait_vm(self, tag):
        self.L.append(("wvm", "wait", tag))
    def sel(self, d, a, b):
        self.e(f"s_mov_b32 s{d}, {b}")
        self.e(f"s_cselect_b32 s{d}, {a}, s{d}")
    def groups(self, k, size=1):
        L = self.L
        def wr_vcc(t): return t.startswith("v_cmp") and t.split()[1].startswith("vcc")
        def rd_vcc(t): return t.startswith("v_cndmask") and t.rstrip().endswith("vcc")
        def wr_scc(t): return t.startswith("s_cmp") or t.startswith("s_add_") or t.startswith("s_sub_") or t.startswith("s_and_") or t.startswith("s_lshl") or t.startswith("s_lshr") or t.startswith("s_or_")
        def rd_scc(t): return t.startswith("s_cselect") or t.startswith("s_addc") or t.startswith("s_cbranch")
        def m0w(t): return " m0," in t
        def m0r(t): return t.rstrip().endswith(" lds")
        cut = [True] * len(L)
        for (w, r) in ((wr_vcc, rd_vcc), (wr_scc, rd_scc), (m0w, m0r)):
            last_w = None
            for j in range(len(L)):
                if r(L[j][1]) and last_w is not None:
                    for i in range(last_w, j):
                        cut[i] = False
                if w(L[j][1]):
                    last_w = j
        out, cur = [], []
        def mk(items):
            def f():
                for (kind, t, tag) in items:
                    if kind == "e": k.e(t)
                    elif kind == "ds": k.ds(t, tag)
                    elif kind == "vm": k.vm(t, tag)
                    elif kind == "wds": k.wait_ds(tag)
                    else: k.wait_vm(tag)
            f.cost = sum(2 if t.startswith(TRANS_) else 1 for (_, t, _) in items)
            f.seq = [icls(t) if kind in ("e", "ds", "vm") else "s" for (kind, t, _) in items]
            f.tags = [tag for (kind, _, tag) in items if kind == "vm"]
            return f
        for i, it in enumerate(L):
            cur.append(it)
            if cut[i] and len(cur) >= size:
                out.append(mk(cur)); cur = []
        if cur:
            out.append(mk(cur))
        return out

class Fill:
    def __init__(self, L=()):
        self.q = list(L)
    def add(self, L):
        self.q += list(L)
    def pop(self, n=1):
        for _ in range(n):
            if self.q:
                self.q.pop(0)()
    def pop_cost(self, c):
        spent = 0
        while self.q and spent < c:
            f = self.q.pop(0)
            spent += getattr(f, "cost", 1)
            f()
        return spent
    def total(self):
        return sum(getattr(f, "cost", 1) for f in self.q)
    def flush(self):
        while self.q:
            self.q.pop(0)()
    def has(self, tag):
        return any(tag in getattr(f, "tags", ()) for f in self.q)
    def flush_tag(self, tag):
        while self.has(tag):
            self.q.pop(0)()

def singles(k, make):
    r = Rec()
    out = []
    for f in make(r):
        f()
        L, r.L = r.L, []
        one = Rec()
        its = []
        for it in L:
            one.L = [it]
            one_g = Rec.groups(one, k)
            its += one_g
        out.append(its)
    return out

def _regs(tok):
    tok = tok.strip().lstrip("-").strip("|")
    m = re.fullmatch(r"([vas])\[(\d+):(\d+)\]", tok)
    if m:
        return {f"{m.group(1)}{i}" for i in range(int(m.group(2)), int(m.group(3)) + 1)}
    if re.fullmatch(r"[vas]\d+", tok) or tok in ("vcc", "m0"):
        return {tok}
    return set()

class Dag:
    def __init__(self, k, rec, window=16):
        self.k, self.window = k, window
        self.ops = []
        lastw, readers, tagged = {}, {}, {}
        for idx, (kind, text, tag) in enumerate(rec.L):
            op = dict(kind=kind, text=text, tag=tag, deps=set(), n=None, t=None)
            if kind == "wds":
                W = set().union(*[self.ops[j]["W"] for j in tagged[tag]]); Rd = set()
                op["deps"] |= set(tagged[tag]); op["cls"] = "s"; op["lat"] = list(tagged[tag])
            else:
                mn, rest = text.split(None, 1)
                toks = [t.split()[0] for t in rest.split(",")]
                rs = [_regs(t) for t in toks]
                if mn.startswith("buffer_store"):
                    W, Rd = set(), set().union(*rs)
                else:
                    W, Rd = rs[0], set().union(*rs[1:]) if len(rs) > 1 else set()
                if mn.startswith("v_cndmask") and len(toks) == 3: Rd = Rd | {"vcc"}
                op["cls"] = icls(text)
                if kind == "ds": tagged.setdefault(tag, []).append(idx)
            op["W"] = W
            for r in Rd:
                if r in lastw: op["deps"].add(lastw[r])
            for w in W:
                if w in lastw: op["deps"].add(lastw[w])
                op["deps"] |= set(readers.get(w, ()))
            if op["cls"] == "x":
                op["deps"] |= {j for j, o in enumerate(self.ops) if o["cls"] == "x"}
            op["deps"].discard(idx)
            for r in Rd: readers.setdefault(r, []).append(idx)
            for w in W:
                lastw[w] = idx; readers[w] = []
            self.ops.append(op)
        self.left = list(range(len(self.ops)))
    @property
    def q(self): return self.left
    def ready(self, i, force=False):
        k, op = self.k, self.ops[i]
        for d in op["deps"]:
            o = self.ops[d]
            if o["n"] is None: return False
            if o["cls"] == "t" and k.n - o["n"] < 1: return False
        if not force and op["kind"] == "wds" and k.t + k.cur - max(self.ops[j]["t"] for j in op["lat"]) < 140: return False
        return True
    def emit(self, i):
        k, op = self.k, self.ops[i]
        if op["kind"] == "e": k.e(op["text"])
        elif op["kind"] == "ds": k.ds(op["text"], op["tag"])
        elif op["kind"] == "vm": k.vm(op["text"], op["tag"])
        else: k.wait_ds(op["tag"])
        op["n"], op["t"] = k.n, k.t + k.cur
        self.left.remove(i)
    def fill(self, budget):
        k = self.k
        while self.left:
            c = [i for i in self.left[:self.window] if self.ready(i)]
            fit = [i for i in c if seq_end(k.cur, [self.ops[i]["cls"]]) <= budget or (k.cur <= 8 and self.ops[i]["cls"] == "x")]
            if not fit: return
            first = lambda cl: next((i for i in fit if self.ops[i]["cls"] in cl), None)
            i = first("s") if k.cur <= 4 else None
            if i is None and k.cur <= 8: i = first("t")
            if i is None: i = fit[0]
            self.emit(i)
    def flush(self):
        while self.left:
            c = [i for i in self.left if self.ready(i, True)]
            if not c:
                self.k.e("s_nop 0"); continue
            self.emit(c[0])
    def has(self, tag): return any(self.ops[i]["tag"] == tag and self.ops[i]["kind"] == "vm" for i in self.left)

def gap(k, mq, vqs=(), wait=None, ds=None, budget=16):
    if wait:
        wait()
    while k.cur <= 4 and mq.q and mq.q[0].seq == ["s"]:
        mq.pop()
    if ds:
        ds()
    if mq.q and mq.q[0].seq != ["s"] and seq_end(k.cur, mq.q[0].seq) <= max(budget, 16 if mq.q[0].seq == ["m"] else 20):
        mq.pop()
    for vq in vqs:
        if isinstance(vq, Dag):
            vq.fill(budget)
        else:
            while vq.q and (seq_end(k.cur, vq.q[0].seq) <= budget or (k.cur <= 8 and seq_end(4, vq.q[0].seq) > budget)):
                vq.pop()
        if vq.q:
            break

MF = "v_mfma_f32_16x16x32_bf16"
def vp(r): return f"v[{r}:{r+1}]"
def v4(r): return f"v[{r}:{r+3}]"
def a4(r): return f"a[{r}:{r+3}]"
def bcm(n, sel):
    lo = [0] * n; h = [1] * n
    for i, hi in sel.items():
        lo[i] = hi; h[i] = hi
    return f"op_sel:[{','.join(map(str, lo))}] op_sel_hi:[{','.join(map(str, h))}]"
def bc(i, n, hi):
    return bcm(n, {i: hi})

def stats_sum(k, st):
    k.e(f"v_add_f32 v{st}, v{st}, v{st+2}")
    k.e(f"v_add_f32 v{st+1}, v{st+1}, v{st+3}")
    for sw in ("v_permlane16_swap_b32", "v_permlane32_swap_b32"):
        k.e(f"v_mov_b32 v{st+2}, v{st}\nv_mov_b32 v{st+3}, v{st+1}")
        k.e(f"{sw} v{st}, v{st+2}\n{sw} v{st+1}, v{st+3}")
        k.e(f"v_add_f32 v{st}, v{st}, v{st+2}\nv_add_f32 v{st+1}, v{st+1}, v{st+3}")

def stats_to_ab(k, st, a, b):
    stats_sum(k, st)
    k.e(f"v_mul_f32 v{st}, 0x{INV640:x}, v{st}")
    k.e(f"v_mul_f32 v{st+1}, 0x{INV640:x}, v{st+1}")
    k.e(f"v_fma_f32 v{st+1}, -v{st}, v{st}, v{st+1}")
    k.e(f"v_max_f32 v{st+1}, 0, v{st+1}")
    k.e(f"v_add_f32 v{st+1}, 0x{EPS5:x}, v{st+1}")
    k.e(f"v_rsq_f32 v{a}, v{st+1}")
    k.e(f"v_mul_f32 v{b}, v{st}, v{a}")
    k.e(f"v_sub_f32 v{b}, 0, v{b}")

def stats_to_rows(k, st, nm, al, c2):
    stats_sum(k, st)
    k.e(f"v_mul_f32 v{nm}, 0x{INV640 | 0x80000000:x}, v{st}")
    k.e(f"v_mul_f32 v{st+1}, 0x{INV640:x}, v{st+1}")
    k.e(f"v_fma_f32 v{st+1}, -v{nm}, v{nm}, v{st+1}")
    k.e(f"v_max_f32 v{st+1}, 0, v{st+1}")
    k.e(f"v_add_f32 v{c2}, 0x{EPS5:x}, v{st+1}")
    k.e(f"v_rsq_f32 v{al}, v{c2}")
    k.e(f"v_mul_f32 v{al}, 0x{LOG2E | 0x80000000:x}, v{al}")

def stats_load(k, st, soff, vtmp, tag):
    k.e(f"v_lshlrev_b32 v{vtmp}, 8, v3\nv_lshl_add_u32 v{vtmp}, v4, 3, v{vtmp}")
    for m in range(2):
        k.vm(f"buffer_load_dwordx2 v[{st+4*m}:{st+4*m+1}], v{vtmp}, {R_}, s{soff} offen offset:{1024*m}{LDF}", tag)
        k.vm(f"buffer_load_dwordx2 v[{st+4*m+2}:{st+4*m+3}], v{vtmp}, {R_}, s{soff} offen offset:{1024*m+128}{LDF}", tag)

def phi_pk(k, xs, ts):
    for x, t in zip(xs, ts):
        for h in (0, 2):
            k.e(f"v_pk_mul_f32 {vp(t+h)}, {vp(x+h)}, s[72:73]")
    for x, t in zip(xs, ts):
        for r in range(4):
            k.e(f"v_exp_f32_e64 v{t+r}, v{t+r} clamp")
    for x, t in zip(xs, ts):
        for r in range(4):
            k.e(f"v_max_f32 v{x+r}, 0, v{x+r}")
    for x, t in zip(xs, ts):
        for h in (0, 2):
            k.e(f"v_pk_add_f32 {vp(t+h)}, {vp(t+h)}, s[70:71]")
    for x, t in zip(xs, ts):
        for h in (0, 2):
            k.e(f"v_pk_add_f32 {vp(x+h)}, {vp(x+h)}, {vp(t+h)}")

def xload(k, dst, ks, so, tag):
    lo = (ks % 4) * 1024
    if ks % 5 != 2:
        k.vm(f"buffer_load_dwordx4 a[{dst}:{dst+3}], v5, {R_}, s{so} offen offset:{lo}{LDF}", tag)
    else:
        k.vm(f"buffer_load_dwordx2 a[{dst}:{dst+1}], v6, {R_}, s{so} offen offset:{lo}{LDF}", tag)
        k.vm(f"buffer_load_dwordx2 a[{dst+2}:{dst+3}], v6, {R_}, s{so} offen offset:{lo+512}{LDF}", tag)

def xa(ks, m):
    return (2 * ks + m) * 4

def x_setup(k, xbuf_const):
    lin(k, 24, xbuf_const, [(S_L, 2 * XS), (S_MT0, 20480)])
    k.e("s_add_u32 s25, s24, 20480")

def x_loader(k):
    def f(ks):
        L = []
        for m in range(2):
            def g(m=m):
                if ks % 4 == 0 and ks:
                    k.e(f"s_add_u32 s{24+m}, s{24+m}, 4096")
                xload(k, xa(ks, m), ks, 24 + m, f"x{ks}")
            L.append(g)
        return L
    return f

def dma_run(k, srd, lds0, s_lds, glob_const, s_glob, nblk, tag, s_tmp=53):
    L = []
    for i in range(nblk):
        def f(i=i):
            if i % 4 == 0:
                k.e(f"s_add_u32 m0, s{s_lds}, {lds0 + 1024*i}")
                k.e(f"s_add_u32 s{s_tmp}, s{s_glob}, 0x{glob_const + 1024*i:x}")
            k.vm(f"buffer_load_dwordx4 v5, s[{srd}:{srd+3}], s{s_tmp} offen offset:{(i%4)*1024} lds", tag)
        L.append(f)
    return L

def dma_w123(k, lds0, glob_terms, glob_const, nblk, per):
    L = newlab("DW")
    k.e(f"s_cmp_eq_u32 s{S_W}, 0\ns_cbranch_scc1 {L}")
    k.e(f"s_sub_u32 s54, s{S_W}, 1\ns_mul_i32 s54, s54, {per*1024}\ns_min_u32 s54, s54, {(nblk - per)*1024}")
    lin(k, 55, glob_const, glob_terms + [(54, 1)])
    n0 = len(k.vmq)
    for f in dma_run(k, SRD, lds0, 54, 0, 55, per, "dw"):
        f()
    del k.vmq[n0:]
    k.label(L)

def l2_touch(k, srd, const, slice_term, nbytes, sharer, nsh, tmp=56):
    per = nbytes // (4 * nsh)
    k.e(f"s_and_b32 s{tmp}, s{sharer}, {nsh - 1}\ns_lshl_b32 s{tmp}, s{tmp}, 2\ns_add_u32 s{tmp}, s{tmp}, s{S_W}\ns_mul_i32 s{tmp}, s{tmp}, {per}")
    k.e(f"s_mul_i32 s{tmp+1}, s{slice_term[0]}, 0x{slice_term[1]:x}\ns_add_u32 s{tmp}, s{tmp}, s{tmp+1}\ns_add_u32 s{tmp}, s{tmp}, 0x{const:x}")
    k.e(f"s_and_b32 s{tmp}, s{tmp}, 0xffffff80")
    n = (per + 127 + 8191) // 8192
    for j in range(n):
        if j:
            step = min(8192, per + 128 - 8192 * j)
            k.e(f"s_add_u32 s{tmp}, s{tmp}, {step}")
        k.vm(f"buffer_load_dword v30, v1, s[{srd}:{srd+3}], s{tmp} offen", "pf")

def wgu_chunk(k, c):
    return dma_run(k, SRD, (c % NSLOT) * CH, S_W7, c * CH, S_WGU, 7, f"c{c}")

def wq_dma(k, region, srd):
    n = 25 if region == 0 else 15
    base = 0 if region == 0 else LDS_B
    def setup():
        k.e(f"s_mul_i32 s54, s{S_W}, {n*1024}")
        lin(k, 55, WS["WQ"][0], [(S_CG, 163840), (54, 1)])
    L = dma_run(k, srd, base, 54, base, 55, n, f"wq{region}")
    f0 = L[0]
    L[0] = lambda: (setup(), f0())
    return L

def wd_reg(f):
    if f < 24:
        return f"a[{160+4*f}:{163+4*f}]"
    if f < 36:
        return f"v[{208+4*(f-24)}:{211+4*(f-24)}]"
    return f"a[{4*(f-36)}:{4*(f-36)+3}]"

def wd_loads(k, f0, f1):
    L = []
    for f in range(f0, f1):
        def g(f=f):
            p, t = f // 5, f % 5
            if f == f0 or t == 0:
                k.e(f"s_add_u32 s58, s{S_WD}, {KO[p] * 5120}")
            if t < 4:
                k.vm(f"buffer_load_dwordx4 {wd_reg(f)}, v5, {R_}, s58 offen offset:{t*1024}", "wd")
            else:
                k.vm(f"buffer_load_dwordx4 {wd_reg(f)}, v9, {R_}, s58 offen", "wd")
        L.append(g)
    return L

def wo_reg(f):
    return f"a[{160+4*f}:{163+4*f}]" if f < 24 else "v[252:255]"

def wo_loads(k):
    L = []
    for f in range(25):
        def g(f=f):
            if f % 4 == 0:
                k.e(f"s_add_u32 s59, s{S_WO}, {(f // 4) * 4096}")
            k.vm(f"buffer_load_dwordx4 {wo_reg(f)}, v5, {R_}, s59 offen offset:{(f%4)*1024}", "wo")
        L.append(g)
    return L

def p1(k):
    BB = 32; ACC1 = 72; ACC2 = 112; ST = 136; CSN = 144; CST = 152
    AT, BT, AN, BN = 164, 166, 168, 176
    TMP = 184; FR = 200; ONES = 220; QF = 224; AD = 236
    def acc(m, t): return ACC1 + (m * 5 + t) * 4 if t < 5 else ACC2 + (m * 3 + t - 5) * 4
    PD = CFG["PDX1"]
    xl = x_loader(k)
    for ks in range(PD):
        for f in xl(ks):
            f()
    def small_loads():
        lin(k, 26, WS["ST"][0], [(S_L, 2 * STS), (S_MT0, 1024)])
        stats_load(k, ST, 26, 10, "small")
        lin(k, 27, WS["CSQ"][0], [(S_CG, 160)])
        k.e("v_lshlrev_b32 v10, 2, v4")
        k.vm(f"buffer_load_dword v{CSN}, v10, {R_}, s27 offen offset:{640*4}", "small")
        k.vm(f"buffer_load_dword v{CSN+2}, v10, {R_}, s27 offen offset:{640*4+64}", "small")
        k.e(f"v_add_u32 v11, {640*4+128}, v10\nv_add_u32 v12, {1280*4-32}, v10")
        k.e("v_cmp_gt_u32 vcc, 8, v4\nv_cndmask_b32 v11, v12, v11, vcc")
        k.vm(f"buffer_load_dword v{CSN+4}, v11, {R_}, s27 offen", "small")
        k.vm(f"buffer_load_dword v{CSN+6}, v12, {R_}, s27 offen offset:64", "small")
        k.vm(f"buffer_load_dword v{CSN+7}, v12, {R_}, s27 offen offset:128", "small")
        k.e("v_lshlrev_b32 v10, 4, v3")
        k.vm(f"buffer_load_dwordx4 v[{CST}:{CST+3}], v10, {R_}, s27 offen", "small")
        k.vm(f"buffer_load_dwordx4 v[{CST+4}:{CST+7}], v10, {R_}, s27 offen offset:64", "small")
        k.e(f"v_mov_b32 v11, 0x{OOB:x}\nv_cmp_gt_u32 vcc, 2, v3\nv_cndmask_b32 v10, v11, v10, vcc")
        k.vm(f"buffer_load_dwordx4 v[{CST+8}:{CST+11}], v10, {R_}, s27 offen offset:128", "small")
    small_loads()
    if CFG["PFA"]:
        l2_touch(k, SRD, WS["WO"][0], (S_CG8, 102400), 102400, S_RB64, 8)
        l2_touch(k, SRD, WS["WGU"][0], (S_CG, 280 * 1024), 140 * 1024, S_RB, 4)
    csn = {0: (CSN, 0), 1: (CSN + 2, 0), 2: (CSN + 4, 0), 3: (CSN + 6, 0), 4: (CSN + 6, 1)}
    pairs = [(0, 2), (0, 3), (1, 2), (1, 3), (1, 4), (2, 3), (2, 4)]
    r1 = Rec()
    T = TMP
    DP, HK, EP, HV = T, T + 3, T + 6, T + 9
    a, b, c, tr, tt_ = T + 12, T + 13, T + 14, T + 15, 13
    r1.e(f"v_lshlrev_b32 v{DP}, 4, v3\nv_mov_b32 v{HK}, 0")
    r1.e(f"v_add_u32 v{a}, {1680-16}, v{DP}\nv_mov_b32 v{b}, 64")
    r1.e(f"v_cmp_eq_u32 vcc, 0, v3")
    r1.e(f"v_cndmask_b32 v{DP+1}, v{a}, v{b}, vcc")
    r1.e(f"v_cndmask_b32 v{HK+1}, 1, v{HK}, vcc")
    r1.e(f"v_add_u32 v{DP+2}, {1680+48}, v{DP}")
    r1.e(f"v_mov_b32 v{b}, 1\nv_cmp_gt_u32 vcc, 2, v3\nv_cndmask_b32 v{HK+2}, 2, v{b}, vcc")
    r1.e(f"v_mul_u32_u24 v{a}, 80, v4")
    r1.e(f"v_subrev_u32 v{EP}, 640, v{a}")
    r1.e(f"v_cmp_le_u32 vcc, 8, v4\nv_cndmask_b32 v{HV}, 3, v{HK}, vcc")
    r1.e(f"v_add_u32 v{b}, 640, v{a}\nv_subrev_u32 v{c}, 960, v{a}")
    r1.e(f"v_mov_b32 v{HV+2}, 1")
    r1.e(f"v_cmp_gt_u32 vcc, 12, v4\nv_cndmask_b32 v{EP+1}, v{c}, v{b}, vcc")
    r1.e(f"v_cndmask_b32 v{HV+1}, 1, v{HK}, vcc")
    r1.e(f"v_add_u32 v{EP+2}, 320, v{a}")
    r1.e(f"s_mul_i32 s28, s{S_W}, 3584\ns_add_u32 s28, s28, {KVR}")
    r1.e(f"v_and_b32 v{tr}, 7, v2\nv_lshlrev_b32 v{tr}, 4, v{tr}\nv_add_u32 v{tr}, 3360, v{tr}")
    for i, (ta, tb) in enumerate(pairs):
        r1.e(f"v_add_u32 v{tt_}, v{DP+ta}, v{EP+tb-2}")
        r1.e(f"v_cmp_eq_u32 vcc, v{HK+ta}, v{HV+tb-2}")
        r1.e(f"v_cndmask_b32 v{tt_}, v{tr}, v{tt_}, vcc")
        r1.e(f"v_add_u32 v{AD+i}, s28, v{tt_}")
    for ta in range(3):
        r1.e(f"v_add_u32 v{tt_}, 1600, v{DP+ta}")
        r1.e(f"v_cmp_gt_u32 vcc, 2, v{HK+ta}")
        r1.e(f"v_cndmask_b32 v{tt_}, v{tr}, v{tt_}, vcc")
        r1.e(f"v_cmp_eq_u32 vcc, 0, v4")
        r1.e(f"v_cndmask_b32 v{tt_}, v{tr}, v{tt_}, vcc")
        r1.e(f"v_add_u32 v{AD+7+ta}, s28, v{tt_}")
    for q in range(4):
        r1.e(f"v_mov_b32 v{ONES+q}, 0x3f803f80")
    r1.e(f"s_mov_b32 s72, 0x{LOG2E:x}\ns_mov_b32 s73, 0x{LOG2E:x}\ns_mov_b32 s70, 0x{EPS6:x}\ns_mov_b32 s71, 0x{EPS6:x}")
    r1.e("v_cmp_gt_u32 s[64:65], 8, v4")
    lin(r1, 29, WS["KV"][0], [(S_L, KVL), (S_CG, KVB)], tmp=30)
    r2 = Rec()
    for m in range(2):
        stats_to_ab(r2, ST + 4 * m, AT + m, BT + m)
    r2.e("v_lshlrev_b32 v10, 4, v3")
    for r in range(1, 4):
        r2.e(f"v_add_u32 v{10+r}, {4*r}, v10")
    for m in range(2):
        for r in range(4):
            r2.ds(f"ds_bpermute_b32 v{AN+4*m+r}, v{10+r}, v{AT+m}", "bp")
            r2.ds(f"ds_bpermute_b32 v{BN+4*m+r}, v{10+r}, v{BT+m}", "bp")
    vf1 = Fill(r1.groups(k)); vf2 = Fill(r2.groups(k))
    def rdB(ks, t):
        b, o = lds_addr(ks * 5120 + t * 1024)
        r = BB + (ks & 1) * 20 + t * 4
        k.ds(f"ds_read_b128 {v4(r)}, v{b} offset:{o}", f"b{ks}_{t}")
    sched = {ks: [] for ks in range(20)}
    xs = singles(k, lambda r: [f for ks in range(PD, 20) for f in x_loader(r)(ks)])
    for i, its in enumerate(xs):
        sched[i // CFG["XR1"]] += its
    wof = Fill(wo_loads(k))
    mq = Fill()
    k.wait_vm("x0")
    k.e("s_barrier")
    pstamp(k, 1)
    o0 = k.over
    for t in range(5):
        rdB(0, t)
    k.wait_ds("b0_0")
    for ks in range(20):
        if ks == PD + 1:
            k.wait_vm("small")
        mq.add(sched[ks])
        vq = [vf1] + ([vf2] if ks > PD + 1 else [])
        for t in range(5):
            r = BB + (ks & 1) * 20 + t * 4
            for m in range(2):
                cc = "0" if ks == 0 else v4(acc(m, t))
                k.e(f"{MF} {v4(acc(m,t))}, {a4(xa(ks,m))}, {v4(r)}, {cc}")
                if m == 0:
                    gap(k, mq, vq, ds=(lambda: rdB(ks + 1, t)) if ks + 1 < 20 else None)
                else:
                    if t < 4:
                        w = lambda: k.wait_both(f"b{ks}_{t+1}")
                    elif ks + 1 < 20:
                        mq.flush_tag(f"x{ks+1}")
                        w = lambda: k.wait_both(f"b{ks+1}_0", f"x{ks+1}")
                    else:
                        w = None
                    gap(k, mq, vq, wait=w)
    mq.flush(); vf1.flush(); vf2.flush()
    if os.environ.get("OVER"):
        print("p1: over pass1", k.over - o0)
    pstamp(k, 2)
    def rdB2(ks, tt):
        b, o = lds_addr(LDS_B + ks * 3072 + tt * 1024)
        r = BB + (ks & 1) * 12 + tt * 4
        k.ds(f"ds_read_b128 {v4(r)}, v{b} offset:{o}", f"q{ks}_{tt}")
    k.ds_drain()
    Lq = newlab("Q1")
    k.e(f"s_cmp_lg_u32 s{S_L}, 0\ns_cbranch_scc1 {Lq}")
    wq1_pos = len(k.vmq)
    for f in wq_dma(k, 1, SRD):
        f()
    del k.vmq[wq1_pos:]
    k.label(Lq)
    for t in range(5):
        cb, ch = csn[t]
        for m in range(2):
            for h in (0, 2):
                k.e(f"v_pk_mul_f32 {vp(TMP+4*m+h)}, {vp(BN+4*m+h)}, {vp(cb)} {bc(1, 2, ch)}")
        for m in range(2):
            for h in (0, 2):
                x = acc(m, t) + h
                k.e(f"v_pk_fma_f32 {vp(x)}, {vp(AN+4*m+h)}, {vp(x)}, {vp(TMP+4*m+h)}")
        wof.pop(3)
        if t < 3:
            if t == 2:
                for m in range(2):
                    for r in range(4):
                        k.e(f"v_mov_b32 v{TMP+8+4*m+r}, v{acc(m,t)+r}")
            phi_pk(k, [acc(0, t), acc(1, t)], [TMP, TMP + 4])
            if t == 2:
                for m in range(2):
                    for r in range(4):
                        k.e(f"v_cndmask_b32 v{acc(m,t)+r}, v{TMP+8+4*m+r}, v{acc(m,t)+r}, s[64:65]")
        for m in range(2):
            x = acc(m, t)
            k.e(f"v_cvt_pk_bf16_f32 v{FR+4*t+2*m}, v{x}, v{x+1}")
            k.e(f"v_cvt_pk_bf16_f32 v{FR+4*t+2*m+1}, v{x+2}, v{x+3}")
        wof.pop(2)
    KVD = BB
    for i, (ta, tb) in enumerate(pairs):
        k.e(f"{MF} {v4(KVD+4*i)}, {v4(FR+4*ta)}, {v4(FR+4*tb)}, 0")
    for ta in range(3):
        i = 7 + ta
        k.e(f"{MF} {v4(KVD+4*i)}, {v4(FR+4*ta)}, {v4(ONES)}, 0")
    wof.flush()
    k.e("s_barrier")
    k.e(f"v_lshlrev_b32 v10, 2, v0\nv_add_u32 v11, {KVR}, v10")
    for i in range(10):
        k.ds(f"ds_write_b128 v{AD+i}, {v4(KVD+4*i)}", "kw")
    gf = Fill()
    for c in range(3):
        gf.add(wgu_chunk(k, c))
    k.e(f"s_waitcnt vmcnt({len(k.vmq) - wq1_pos})")
    gf.pop(4)
    k.ds_drain()
    k.e("s_barrier")
    RD = TMP
    for q in range(4):
        for w in range(4):
            k.ds(f"ds_read_b32 v{RD+4*q+w}, v11 offset:{w*3584+q*1024}", f"kr{q}")
    for tt in range(3):
        rdB2(0, tt)
    k.e(f"v_mov_b32 v12, 0x{OOB:x}\nv_cmp_gt_u32 vcc, 72, v0\nv_cndmask_b32 v11, v12, v10, vcc")
    for q in range(4):
        k.wait_ds(f"kr{q}")
        k.e(f"v_pk_add_f32 {vp(RD+4*q)}, {vp(RD+4*q)}, {vp(RD+4*q+2)}")
        k.e(f"v_add_f32 v{RD+4*q}, v{RD+4*q}, v{RD+4*q+1}")
        va = 10 if q < 3 else 11
        k.vm(f"buffer_atomic_add_f32 v{RD+4*q}, v{va}, {R_}, s29 offen offset:{q*1024} sc1", "at")
    pstamp(k, 3)
    r3 = Rec()
    D0L, D0H, D1L, D1H, RA, RB0, RB1 = TMP, TMP + 1, TMP + 2, TMP + 3, TMP + 4, TMP + 5, TMP + 6
    VO = AD
    r3.e(f"v_mov_b32 v10, 0x{OOB:x}")
    r3.e(f"v_lshlrev_b32 v{D0L}, 4, v3")
    r3.e(f"v_mov_b32 v11, 64\nv_subrev_u32 v12, 16, v{D0L}")
    r3.e(f"v_cmp_eq_u32 vcc, 0, v3\nv_cndmask_b32 v{D0H}, v10, v11, vcc\nv_cndmask_b32 v{D1L}, v12, v10, vcc")
    r3.e(f"v_add_u32 v11, 48, v{D0L}\nv_cmp_gt_u32 vcc, 2, v3\nv_cndmask_b32 v{D1H}, v10, v11, vcc")
    r3.e(f"v_mul_u32_u24 v{RA}, 80, v4")
    r3.e(f"v_and_b32 v11, 3, v4\nv_mul_u32_u24 v11, 80, v11\nv_add_u32 v11, 1280, v11\nv_lshrrev_b32 v12, 2, v4")
    r3.e(f"v_cmp_eq_u32 vcc, 0, v12\nv_cndmask_b32 v{RB0}, v10, v11, vcc")
    r3.e(f"v_cmp_eq_u32 vcc, 1, v12\nv_cndmask_b32 v{RB1}, v10, v11, vcc")
    n = 0
    for hh in range(2):
        for ty in range(2):
            for dp in ((D0L, D0H) if hh == 0 else (D1L, D1H)):
                row = RA if ty == 0 else (RB0 if hh == 0 else RB1)
                r3.e(f"v_add_u32 v{VO+n}, v{row}, v{dp}"); n += 1
    r3.e(f"s_lshr_b32 s30, s{S_CG}, 2\ns_and_b32 s31, s{S_CG}, 3")
    lin(r3, 32, WS["O"][0], [(S_L, XS), (S_MT0, 20480), (30, 5120)], tmp=34)
    r3.e("s_lshl_b32 s33, s31, 8\ns_add_u32 s33, s33, s32\ns_add_u32 s33, s33, 2048")
    r3.e("s_cmp_ge_u32 s31, 2\ns_cselect_b32 s34, 1, 0\ns_add_u32 s34, s34, s31\ns_lshl_b32 s34, s34, 10\ns_add_u32 s32, s32, s34")
    VC = VO + 8
    r3.e(f"v_lshlrev_b32 v11, 4, v4\nv_lshl_add_u32 v11, v3, 3, v11")
    r3.e(f"v_cmp_gt_u32 vcc, 2, v3\nv_cndmask_b32 v{VC}, v10, v11, vcc")
    r3.e("v_cmp_eq_u32 s[64:65], 0, v3")
    xio(r3, WS["X"][0] + XS)
    vf3 = Fill(r3.groups(k))
    for ks in range(20):
        if ks == CFG["KSIG"]:
            k.wait_vm("at")
            k.e("s_barrier")
            flag(k, S_FCW)
        if ks == 17:
            assert not vf3.q or True
            vf3.flush()
            poll_issue(k, S_FCR)
        n = 0
        for tt in range(3):
            r = BB + (ks & 1) * 12 + tt * 4
            k.wait_ds(f"q{ks}_{tt}")
            for m in range(2):
                A = acc(m, 5 + tt)
                cc = "0" if ks == 0 else v4(A)
                k.e(f"{MF} {v4(A)}, {v4(r)}, {a4(xa(ks,m))}, {cc}")
                if m == 0 and ks + 1 < 20:
                    rdB2(ks + 1, tt)
                    if ks >= 1:
                        vf3.pop()
                elif n == 3:
                    gf.pop()
                elif ks >= 1:
                    vf3.pop(2)
                n += 1
    gf.flush(); vf3.flush()
    pstamp(k, 4)
    poll_check(k, S_FCR, S_E1)
    pstamp(k, 5)
    KVF = 32
    for hh in range(2):
        dl, dh = (D0L, D0H) if hh == 0 else (D1L, D1H)
        for ty in (2, 0, 1):
            for half, dp in enumerate((dl, dh)):
                r = KVF + (hh * 3 + ty) * 8 + 4 * half
                if ty == 2:
                    k.vm(f"buffer_load_dwordx4 {v4(r)}, v{dp}, {R_}, s29 offen offset:{hh*1680+1600} sc1", "kv")
                else:
                    vo = VO + hh * 4 + ty * 2 + half
                    k.vm(f"buffer_load_dwordx4 {v4(r)}, v{vo}, {R_}, s29 offen offset:{hh*1680} sc1", "kv")
    for t in range(5, 8):
        ts = [ST, ST + 4]
        for m in range(2):
            for h in (0, 2):
                k.e(f"v_pk_mul_f32 {vp(ts[m]+h)}, {vp(CST+4*(t-5)+h)}, {vp(BT)} {bc(1, 2, m)}")
        for m in range(2):
            for h in (0, 2):
                x = acc(m, t) + h
                k.e(f"v_pk_fma_f32 {vp(x)}, {vp(x)}, {vp(AT)}, {vp(ts[m]+h)} {bc(1, 3, m)}")
        phi_pk(k, [acc(0, t), acc(1, t)], ts)
        for m in range(2):
            x = acc(m, t)
            k.e(f"v_cvt_pk_bf16_f32 v{QF+6*m+2*(t-5)}, v{x}, v{x+1}")
            k.e(f"v_cvt_pk_bf16_f32 v{QF+6*m+2*(t-5)+1}, v{x+2}, v{x+3}")
    k.wait_vm("kv")
    for fi in (2, 5, 0, 3, 1, 4):
        r = KVF + fi * 8
        k.e(f"v_cvt_pk_bf16_f32 v{r}, v{r}, v{r+1}\nv_cvt_pk_bf16_f32 v{r+1}, v{r+2}, v{r+3}")
        k.e(f"v_cvt_pk_bf16_f32 v{r+2}, v{r+4}, v{r+5}\nv_cvt_pk_bf16_f32 v{r+3}, v{r+6}, v{r+7}")
    OD = 80
    for ty in (2, 0, 1):
        for m in range(2):
            for hh in range(2):
                F = v4(QF + 6 * m + 2 * hh)
                o = OD + 20 * m
                fa = KVF + (hh * 3 + ty) * 8
                if ty == 2:
                    k.e(f"{MF} {v4(o+12+4*hh)}, {v4(fa)}, {F}, 0")
                elif ty == 0:
                    k.e(f"{MF} {v4(o+4*hh)}, {v4(fa)}, {F}, 0")
                else:
                    k.e(f"{MF} {v4(o+8)}, {v4(fa)}, {F}, {'0' if hh == 0 else v4(o+8)}")
    for m in range(2):
        o = OD + 20 * m
        k.e(f"v_add_f32 v{o+12}, s70, v{o+12}\nv_add_f32 v{o+16}, s70, v{o+16}")
    for m in range(2):
        o = OD + 20 * m
        k.e(f"v_rcp_f32 v{o+12}, v{o+12}\nv_rcp_f32 v{o+16}, v{o+16}")
    for m in range(2):
        o = OD + 20 * m
        k.e(f"v_cndmask_b32 v{o+14}, v{o+16}, v{o+12}, s[64:65]")
        for h in (0, 2):
            k.e(f"v_pk_mul_f32 {vp(o+h)}, {vp(o+h)}, {vp(o+12)} {bc(1, 2, 0)}")
            k.e(f"v_pk_mul_f32 {vp(o+4+h)}, {vp(o+4+h)}, {vp(o+16)} {bc(1, 2, 0)}")
    for m in range(2):
        o = OD + 20 * m
        k.e(f"v_cvt_pk_bf16_f32 v{o}, v{o}, v{o+1}\nv_cvt_pk_bf16_f32 v{o+1}, v{o+2}, v{o+3}")
        k.e(f"v_cvt_pk_bf16_f32 v{o+2}, v{o+4}, v{o+5}\nv_cvt_pk_bf16_f32 v{o+3}, v{o+6}, v{o+7}")
        if m == 1:
            k.e("s_add_u32 s32, s32, 20480")
        k.vm(f"buffer_store_dwordx4 {v4(o)}, v5, {R_}, s32 offen{STF}", "st")
    for m in range(2):
        o = OD + 20 * m
        for h in (0, 2):
            k.e(f"v_pk_mul_f32 {vp(o+8+h)}, {vp(o+8+h)}, {vp(o+14)} {bc(1, 2, 0)}")
        k.e(f"v_cvt_pk_bf16_f32 v{o+8}, v{o+8}, v{o+9}\nv_cvt_pk_bf16_f32 v{o+9}, v{o+10}, v{o+11}")
        if m == 1:
            k.e("s_add_u32 s33, s33, 20480")
        k.vm(f"buffer_store_dwordx2 {vp(o+8)}, v{VC}, {R_}, s33 offen{STF}", "st")
    if CFG["PFB"]:
        l2_touch(k, SRD, WS["WD"][0], (S_CG8, 56 * 5120), 56 * 5120, S_RB64, 8)
        l2_touch(k, SRD, WS["WGU"][0] + 140 * 1024, (S_CG, 280 * 1024), 140 * 1024, S_RB, 4)
    pstamp(k, 6)
    k.wait_vm("st")
    pstamp(k, 20)
    k.e("s_barrier")
    flag(k, S_FLW, S_EP)
    poll(k, S_FLR, S_EP)
    pstamp(k, 7)

ACCK = 32
def red_write(k, ml):
    k.e(f"v_add_u32 v10, s{40+ml}, v5")
    for t in range(5):
        a = ACCK + (ml * 5 + t) * 4
        k.ds(f"ds_write_b128 v10, {v4(a)} offset:{t*1024}", "rw")

def red_setup(k):
    for ml in range(3):
        d = 40 + ml
        k.e(f"s_add_u32 s{d}, s{S_W}, {1+ml}\ns_and_b32 s{d}, s{d}, 3")
        k.e(f"s_mul_i32 s{d}, s{d}, {3*5120}\ns_add_u32 s{d}, s{d}, {LDS_B + ml*5120}")
    k.e(f"s_mul_i32 s43, s{S_W}, {15*1024}\ns_add_u32 s43, s43, {LDS_B}")

def xio_setup(k):
    lin(k, 66, 0, [(S_MT, 20480)])
    k.e(f"s_and_b32 s46, s{S_CG8}, 1")
    k.e(f"s_mul_i32 s47, s{S_CG8}, 5\ns_lshr_b32 s47, s47, 1")
    k.e(f"s_lshl_b32 s47, s47, 10\ns_add_u32 s66, s66, s47")
    k.e(f"s_cmp_eq_u32 s46, 1")
    k.sel(47, 512, 2048)
    k.e(f"s_add_u32 s67, s66, s47")
    k.e(f"s_cmp_eq_u32 s46, 1")
    k.e(f"s_cselect_b32 s47, 1024, 0\ns_add_u32 s66, s66, s47")

def xio(k, buf_const):
    k.e(f"s_mul_i32 s45, s{S_L}, 0x{2*XS:x}\ns_add_u32 s45, s45, 0x{buf_const:x}")
    k.e("s_add_u32 s44, s45, s66\ns_add_u32 s45, s45, s67")

def red_finish(k, T, fill=None, nfill=4):
    k.e(f"v_add_u32 v10, s43, v5")
    for j in range(3):
        for t in range(5):
            r = T + (j * 5 + t) * 4
            k.ds(f"ds_read_b128 {v4(r)}, v10 offset:{(j*5+t)*1024}", f"rr{j}")
    own = ACCK + 15 * 4
    U = T + 60
    for q in range(10):
        k.e(f"v_lshlrev_b32 v{U+2*q}, 16, v{RES+q}\nv_and_b32 v{U+2*q+1}, 0xffff0000, v{RES+q}")
    for q in range(10):
        k.e(f"v_pk_add_f32 {vp(own+2*q)}, {vp(own+2*q)}, {vp(U+2*q)}")
    if fill:
        fill.pop(nfill)
    for j in range(3):
        k.wait_ds(f"rr{j}")
        for q in range(10):
            k.e(f"v_pk_add_f32 {vp(own+2*q)}, {vp(own+2*q)}, {vp(T+j*20+2*q)}")
    for q in range(10):
        k.e(f"v_cvt_pk_bf16_f32 v{RES+q}, v{own+2*q}, v{own+2*q+1}")

def x_store(k, st_const, st_lstride):
    P = RES
    k.vm(f"buffer_store_dwordx4 {v4(P)}, v5, {R_}, s44 offen{STF}", "st")
    k.vm(f"buffer_store_dwordx4 {v4(P+4)}, v5, {R_}, s44 offen offset:1024{STF}", "st")
    k.vm(f"buffer_store_dwordx2 {vp(P+8)}, v6, {R_}, s45 offen{STF}", "st")
    k.e("s_mov_b32 s46, 0x3f803f80")
    k.e("v_mov_b32 v10, 0\nv_mov_b32 v11, 0\nv_mov_b32 v12, 0\nv_mov_b32 v13, 0")
    for q in range(10):
        k.e(f"v_dot2_f32_bf16 v{10+2*(q&1)}, v{P+q}, s46, v{10+2*(q&1)}")
        k.e(f"v_dot2_f32_bf16 v{11+2*(q&1)}, v{P+q}, v{P+q}, v{11+2*(q&1)}")
    k.e(f"v_lshlrev_b32 v14, 3, v4\nv_mov_b32 v15, 0x{OOB:x}")
    k.e("v_cmp_eq_u32 vcc, 0, v3\nv_cndmask_b32 v14, v15, v14, vcc")
    lin(k, 46, st_const, [(S_L, st_lstride), (S_MT, 1024), (S_CG8, 128)])
    k.e("v_pk_add_f32 v[10:11], v[10:11], v[12:13]")
    for sw in ("v_permlane16_swap_b32", "v_permlane32_swap_b32"):
        k.e("v_mov_b32 v12, v10\nv_mov_b32 v13, v11")
        k.e(f"{sw} v10, v12\n{sw} v11, v13")
        k.e("v_pk_add_f32 v[10:11], v[10:11], v[12:13]")
    k.vm(f"buffer_store_dwordx2 v[10:11], v14, {R_}, s46 offen{STF}", "st")

def short_mt(k, ml, dst):
    k.e(f"s_add_u32 s{dst}, s{S_W}, {1+ml}\ns_and_b32 s{dst}, s{dst}, 3\ns_lshl_b32 s8, s{S_RB64}, 2\ns_add_u32 s{dst}, s{dst}, s8")

def o_setup(k):
    for ml in range(4):
        short_mt(k, ml, 35)
        lin(k, 36 + ml, WS["O"][0], [(35, 20480), (S_W, 5120)])

def p2(k):
    def oload(kk, ml):
        r = (ml * 5 + kk) * 4
        if kk < 4:
            k.vm(f"buffer_load_dwordx4 {a4(r)}, v5, {R_}, s{36+ml} offen offset:{kk*1024}{LDF}", f"o{ml}_{kk}")
        else:
            k.vm(f"buffer_load_dwordx4 {a4(r)}, v9, {R_}, s{36+ml} offen{LDF}", f"o{ml}_{kk}")
    PO = CFG["PDO"]
    for kk in range(PO):
        for ml in range(4):
            oload(kk, ml)
    wdf = Fill(wd_loads(k, 0, 24))
    x_setup(k, WS["X"][0] + XS)
    for kk in range(5):
        for ml in range(4):
            k.wait_vm(f"o{ml}_{kk}")
            if ml == 0 and kk == 0:
                pstamp(k, 8)
            r = (ml * 5 + kk) * 4
            for t in range(5):
                a_ = ACCK + (ml * 5 + t) * 4
                cc = "0" if kk == 0 else v4(a_)
                k.e(f"{MF} {v4(a_)}, {wo_reg(kk*5+t)}, {a4(r)}, {cc}")
                if t == 0 and kk + PO < 5:
                    oload(kk + PO, ml)
            if kk == 4 and ml >= 1:
                red_write(k, ml - 1)
                wdf.pop(CFG["WD2A"])
    wdf.pop(CFG["WD2B"])
    k.ds_drain()
    k.e("s_barrier")
    pstamp(k, 9)
    red_finish(k, 112, wdf, CFG["WD2R"])
    x_store(k, WS["ST"][0] + STS, 2 * STS)
    wdf.pop(CFG["WD2D"])
    pstamp(k, 10)
    k.wait_vm("st")
    pstamp(k, 21)
    k.e("s_barrier")
    flag(k, S_FLW, S_EP)
    wdf.flush()
    dma_w123(k, 3 * CH, [(S_CG, 280 * 1024)], WS["WGU"][0] + 3 * CH, 56, 19)
    poll(k, S_FLR, S_EP)
    pstamp(k, 11)

HB = 112
NB = 6
def hb(p, ml): return HB + (p % NB) * 16 + ml * 4

def h_setup(k):
    for ml in range(4):
        short_mt(k, ml, 35)
        d = S_HB + 4 * ml
        lin(k, d, WS["H"][0], [(35, 56 * 1024), (S_W, 14 * 1024)])
        for q in range(1, 4):
            k.e(f"s_add_u32 s{d+q}, s{d}, {4096*q}")

def h_stage(k, p):
    ks = KO[p]
    L = []
    for ml in range(4):
        def f(ml=ml):
            b = hb(p, ml)
            so = S_HB + 4 * ml + ks // 4
            lo = (ks % 4) * 1024
            if ks % 7 != 6:
                k.vm(f"buffer_load_dwordx4 {v4(b)}, v5, {R_}, s{so} offen offset:{lo}{LDF}", f"h{p}")
            else:
                k.vm(f"buffer_load_dwordx2 {vp(b)}, v6, {R_}, s{so} offen offset:{lo}{LDF}", f"h{p}")
                k.vm(f"buffer_load_dwordx2 {vp(b+2)}, v6, {R_}, s{so} offen offset:{lo+512}{LDF}", f"h{p}")
        L.append(f)
    return L

def p3(k):
    BB = 32; S0 = 64; S6 = 96; S1 = 112; CS = 144; TM = 160; ST = 200
    C2, NM, AL = 10, 12, 14
    VCS = ST + 7
    NF = 280; RA = CFG["RA"]
    def acc(S, m, q): return S + (m * 4 + q) * 4
    def acc6(m, q): return S6 + (m * 2 + q) * 4
    def finfo(i):
        if i < 120:
            ks, j = divmod(i, 6)
            return ks, (lambda m: acc(S0, m, j)) if j < 4 else (lambda m: acc6(m, j - 4))
        ks, j = divmod((i - 120) % 80, 4)
        return ks, (lambda m: acc(S1 if i < 200 else S0, m, j))
    def bbuf(i): return BB + (i % 8) * 4
    def rdB(i):
        b, o = lds_addr((i % (NSLOT * 28)) * 1024)
        k.ds(f"ds_read_b128 {v4(bbuf(i))}, v{b} offset:{o}", f"b{i}")
    PD = CFG["PDX3"]
    xl = x_loader(k)
    for ks in range(PD):
        for f in xl(ks):
            f()
    def small_loads():
        lin(k, 26, WS["ST"][0] + STS, [(S_L, 2 * STS), (S_MT0, 1024)])
        stats_load(k, ST, 26, 14, "small")
        lin(k, 27, WS["CSG"][0], [(S_CG, 432)])
        k.e(f"s_mov_b32 m0, {CSL}")
        k.vm(f"buffer_load_dwordx4 v5, {R_}, s27 offen lds", "small")
        k.e(f"s_add_u32 s27, s27, {WS['CSU'][0] - WS['CSG'][0]}\ns_mov_b32 m0, {CSL + 1024}")
        k.vm(f"buffer_load_dwordx4 v5, {R_}, s27 offen lds", "small")
    small_loads()
    sched = {i: [] for i in range(NF)}
    xs = singles(k, lambda r: [f for ks in range(PD, 20) for f in x_loader(r)(ks)])
    for j, its in enumerate(xs):
        sched[j * CFG["XS3"]] += its
    B1, B2, B4, B5 = 55, 111, CFG["B4"], CFG["B5"]
    refills = [((5, 6), B1 + 1, CFG["DS3"]), ((7, 8), B2 + 1, CFG["DS3"]), ((9,), B4 + 1, 1)]
    for (cs_, i0, st) in refills:
        L = singles(k, lambda r: [f for c in cs_ for f in wgu_chunk(r, c)])
        for j, its in enumerate(L):
            sched[i0 + j * st] += its
    if CFG["PFC"]:
        for its in singles(k, lambda r: [lambda: l2_touch(r, SRDQ, WS["WQ"][0], (S_CG, 163840), 163840, S_RB, 4, tmp=74)]):
            sched[CFG["PFC"]] += its
    wv = singles(k, lambda r: wd_loads(r, 24, 36))
    for j, its in enumerate(wv):
        sched[CFG["WV0"] + 3 * j] += its
    wa = singles(k, lambda r: wd_loads(r, 36, 70))
    for j, its in enumerate(wa):
        sched[min(204 + 4 * (j >> 1) + 2 * (j & 1), NF - 1)] += its
    r2 = Rec()
    for m in range(2):
        stats_to_rows(r2, ST + 4 * m, NM + m, AL + m, C2 + m)
    r2.e(f"v_lshlrev_b32 v{VCS}, 4, v3\nv_add_u32 v{VCS}, {CSL}, v{VCS}")
    r2.e("v_cmp_gt_u32 s[64:65], 3, v3")
    r2.e(f"s_lshr_b32 s34, s{S_CG}, 1\ns_and_b32 s35, s{S_CG}, 1")
    lin(r2, 30, WS["H"][0], [(S_L, HS), (S_MT0, 56 * 1024), (34, 7 * 1024)], tmp=8)
    r2.e(f"s_lshl_b32 s32, s35, 9\ns_add_u32 s32, s32, {6*1024}\ns_add_u32 s32, s32, s30")
    r2.e(f"s_mul_i32 s34, s35, {3*1024}\ns_add_u32 s30, s30, s34")
    r2.e(f"s_add_u32 s31, s30, {56*1024}\ns_add_u32 s33, s32, {56*1024}")
    xio(r2, WS["X"][0] + 2 * XS)
    vf = Fill(r2.groups(k))
    def math(ra, E):
        for (x, y, cg_, cu, t, m) in E:
            ra.e(f"v_fma_f32 v{x}, v{cg_}, v{NM+m}, v{x}")
        for (x, y, cg_, cu, t, m) in E:
            ra.e(f"v_mul_f32 v{t}, v{x}, v{AL+m}")
        for (x, y, cg_, cu, t, m) in E:
            ra.e(f"v_exp_f32 v{t}, v{t}")
            ra.e(f"v_fma_f32 v{y}, v{cu}, v{NM+m}, v{y}")
        for (x, y, cg_, cu, t, m) in E:
            ra.e(f"v_fma_f32 v{t}, v{t}, v{C2+m}, v{C2+m}")
        for (x, y, cg_, cu, t, m) in E:
            ra.e(f"v_rcp_f32 v{t}, v{t}")
            ra.e(f"v_mul_f32 v{x}, v{x}, v{y}")
        for (x, y, cg_, cu, t, m) in E:
            ra.e(f"v_mul_f32 v{x}, v{x}, v{t}")
    def ep_pair(S, jp, tag):
        ra = Rec()
        for i in range(2):
            ra.ds(f"ds_read_b128 {v4(CS+4*i)}, v{VCS} offset:{64*(2*jp+i)}", "cs" + tag)
            ra.ds(f"ds_read_b128 {v4(CS+8+4*i)}, v{VCS} offset:{1024+64*(2*jp+i)}", "cs" + tag)
        ra.wait_ds("cs" + tag)
        for m in range(2):
            math(ra, [(acc(S, m, i) + r, acc(S, m, 2 + i) + r, CS + 4 * i + r, CS + 8 + 4 * i + r, TM + 8 * m + 4 * i + r, m) for i in range(2) for r in range(4)])
            P = acc(S, m, 2)
            for i in range(2):
                x = acc(S, m, i)
                ra.e(f"v_cvt_pk_bf16_f32 v{P+2*i}, v{x}, v{x+1}")
                ra.e(f"v_cvt_pk_bf16_f32 v{P+2*i+1}, v{x+2}, v{x+3}")
            ra.vm(f"buffer_store_dwordx4 {v4(P)}, v5, {R_}, s{30+m} offen offset:{jp*1024}{STF}", tag)
        return Dag(k, ra)
    def ep_six(tag):
        ra = Rec()
        ra.ds(f"ds_read_b128 {v4(CS)}, v{VCS} offset:{64*6}", "cs" + tag)
        ra.ds(f"ds_read_b128 {v4(CS+4)}, v{VCS} offset:{1024+64*6}", "cs" + tag)
        ra.wait_ds("cs" + tag)
        for r in range(8):
            ra.e(f"v_cndmask_b32 v{CS+r}, 0, v{CS+r}, s[64:65]")
        math(ra, [(acc6(m, 0) + r, acc6(m, 1) + r, CS + r, CS + 4 + r, TM + 4 * m + r, m) for m in range(2) for r in range(4)])
        for m in range(2):
            x, P = acc6(m, 0), acc6(m, 1)
            ra.e(f"v_cvt_pk_bf16_f32 v{P}, v{x}, v{x+1}")
            ra.e(f"v_cvt_pk_bf16_f32 v{P+1}, v{x+2}, v{x+3}")
            ra.vm(f"buffer_store_dwordx2 {vp(P)}, v6, {R_}, s{32+m} offen{STF}", tag)
        return Dag(k, ra)
    e01, e6, e23 = ep_pair(S0, 0, "h1"), ep_six("h1"), ep_pair(S1, 1, "h2")
    mq = Fill()
    k.wait_vm("x0")
    k.e("s_barrier")
    pstamp(k, 12)
    for t in range(RA):
        rdB(t)
    k.wait_ds("b0")
    o0 = k.over
    ISM = 6 * (PD + 1)
    def publish(tg):
        mq.flush_tag(tg)
        k.wait_vm(tg)
    for i in range(NF):
        ks, accs = finfo(i)
        if os.environ.get("OVER") and i % 20 == 0:
            print("  i", i, "over", k.over - o0, "mq", len(mq.q), "vf", len(vf.q), "e01", len(e01.q), "e6", len(e6.q), "e23", len(e23.q))
        if i == ISM:
            k.wait_vm("small")
        if i == B1:
            k.e("s_barrier")
        if i == B2:
            publish("c6"); k.e("s_barrier")
        if i == B4:
            publish("c8"); k.e("s_barrier")
        if i in (B1, B2, B4): pstamp(k, {B1: 46, B2: 48, B4: 50}[i])
        if i in (B1 + 1, B2 + 1, B4 + 1): pstamp(k, {B1 + 1: 47, B2 + 1: 49, B4 + 1: 51}[i])
        if i == B5:
            pstamp(k, 26)
            e01.flush(); e6.flush()
            publish("c9")
            k.wait_vm("h1")
            k.e("s_barrier")
            flag(k, S_FLW, S_EP)
            pstamp(k, 27)
        if i == 120:
            vf.flush()
            pstamp(k, 13)
        if i == 200:
            e01.flush()
            pstamp(k, 14)
        if i == CFG["HP1I"]:
            poll_issue(k, S_FLR)
        mq.add(sched[i])
        vq = []
        if ISM < i < 120: vq = [vf]
        elif 120 <= i < 202: vq = [e01, e6]
        elif i >= 202: vq = [e6, e23]
        r = bbuf(i)
        first = (ks == 0)
        for m in range(2):
            A = accs(m)
            cc = "0" if first else v4(A)
            k.e(f"{MF} {v4(A)}, {v4(r)}, {a4(xa(ks,m))}, {cc}")
            if m == 0:
                gap(k, mq, vq, ds=(lambda: rdB(i + RA)) if i + RA < NF else None, budget=CFG["BUD"])
            else:
                w = None
                if i + 1 < NF:
                    xt = None
                    if i + 1 < 120 and (i + 1) % 6 == 0:
                        xt = f"x{(i + 1) // 6}"
                        mq.flush_tag(xt)
                    w = lambda: k.wait_both(f"b{i+1}", xt)
                gap(k, mq, vq, wait=w, budget=CFG["BUD"])
    pstamp(k, 28)
    mq.flush()
    if os.environ.get("OVER"):
        print("p3: over", k.over - o0, "left e6", len(e6.q), "e23", len(e23.q))
    e6.flush(); e23.flush()
    pstamp(k, 22)
    CSB = BB; TF = BB + 16
    for j in range(2):
        k.ds(f"ds_read_b128 {v4(CSB+4*j)}, v{VCS} offset:{64*(4+j)}", "csf")
        k.ds(f"ds_read_b128 {v4(CSB+8+4*j)}, v{VCS} offset:{1024+64*(4+j)}", "csf")
    hf = Fill()
    def tiles(m):
        k.wait_ds("csf")
        Q = [(j, h, TF + 4 * j + h) for j in range(2) for h in (0, 2)]
        for (j, h, tm) in Q:
            x = acc(S0, m, j) + h
            k.e(f"v_pk_fma_f32 {vp(x)}, {vp(CSB+4*j+h)}, {vp(NM)}, {vp(x)} {bc(1, 3, m)}")
        for (j, h, tm) in Q:
            k.e(f"v_pk_mul_f32 {vp(tm)}, {vp(acc(S0,m,j)+h)}, {vp(AL)} {bc(1, 2, m)}")
        for (j, h, tm) in Q:
            k.e(f"v_exp_f32 v{tm}, v{tm}\nv_exp_f32 v{tm+1}, v{tm+1}")
        hf.pop(2)
        for (j, h, tm) in Q:
            y = acc(S0, m, 2 + j) + h
            k.e(f"v_pk_fma_f32 {vp(y)}, {vp(CSB+8+4*j+h)}, {vp(NM)}, {vp(y)} {bc(1, 3, m)}")
        for (j, h, tm) in Q:
            k.e(f"v_pk_fma_f32 {vp(tm)}, {vp(tm)}, {vp(C2)}, {vp(C2)} {bcm(3, {1: m, 2: m})}")
        hf.pop(2)
        for (j, h, tm) in Q:
            k.e(f"v_rcp_f32 v{tm}, v{tm}\nv_rcp_f32 v{tm+1}, v{tm+1}")
        hf.pop(2)
        for (j, h, tm) in Q:
            x = acc(S0, m, j) + h
            k.e(f"v_pk_mul_f32 {vp(x)}, {vp(x)}, {vp(acc(S0,m,2+j)+h)}")
        hf.pop(2)
        for (j, h, tm) in Q:
            x = acc(S0, m, j) + h
            k.e(f"v_pk_mul_f32 {vp(x)}, {vp(x)}, {vp(tm)}")
        P = acc(S0, m, 2)
        for j in range(2):
            x = acc(S0, m, j)
            k.e(f"v_cvt_pk_bf16_f32 v{P+2*j}, v{x}, v{x+1}")
            k.e(f"v_cvt_pk_bf16_f32 v{P+2*j+1}, v{x+2}, v{x+3}")
        k.vm(f"buffer_store_dwordx4 {v4(P)}, v5, {R_}, s{30+m} offen offset:2048{STF}", "st")
    if CFG["HE"] == 0:
        poll_check(k, S_FLR, S_EP)
        for p in range(4):
            hf.add(h_stage(k, p))
        tiles(0)
        k.wait_vm("h2")
        k.e("s_barrier")
        flag(k, S_FLW, S_EP)
        k.e(f"s_mov_b32 s80, s{S_EP}")
        tiles(1)
    else:
        tiles(0)
        k.wait_vm("h2")
        poll_check(k, S_FLR, S_EP)
        flag(k, S_FLW, S_EP)
        k.e(f"s_mov_b32 s80, s{S_EP}")
        for p in range(4):
            hf.add(h_stage(k, p))
        tiles(1)
    hf.flush()
    pstamp(k, 15)

def p4(k):
    HF3, HP2, HP3 = CFG["HF3"], CFG["HP2"], CFG["HP3"]
    wq = Fill([f for its in singles(k, lambda r: wq_dma(r, 0, SRDQ)) for f in its])
    mq = Fill()
    issued = 4
    def want(p):
        nonlocal issued
        lim = 6 if p < HP2 else (10 if p < HP3 else 14)
        while issued < min(lim, p + NB):
            q = issued
            for its in singles(k, lambda r: h_stage(r, q)):
                mq.add(its)
            issued += 1
    k.wait_vm("h0")
    pstamp(k, 16)
    for p in range(14):
        pstamp(k, 32 + p)
        if p == HF3:
            k.wait_vm("st")
            k.e("s_barrier")
            flag(k, S_FLW, S_EP)
        if p == HP2 - 1 or p == HP3 - 1:
            poll_issue(k, S_FLR)
        if p == HP2:
            poll_check(k, S_FLR, 80)
            pstamp(k, 23)
        if p == HP3:
            poll_check(k, S_FLR, S_EP)
            pstamp(k, 25)
        want(p)
        for ml in range(4):
            for t in range(5):
                a_ = ACCK + (ml * 5 + t) * 4
                cc = "0" if p == 0 else v4(a_)
                k.e(f"{MF} {v4(a_)}, {wd_reg(p*5+t)}, {v4(hb(p, ml))}, {cc}")
                w = None
                if ml == 3 and t == 4 and p < 13:
                    mq.flush_tag(f"h{p+1}")
                    w = lambda: k.wait_vm(f"h{p+1}")
                gap(k, mq if (mq.q or p < CFG["WQP"]) else wq, wait=w)
            if p == 13 and ml >= 1:
                red_write(k, ml - 1)
        mq.flush()
    pstamp(k, 17)
    k.ds_drain()
    k.e("s_barrier")
    red_finish(k, 112, wq)
    k.e(f"s_cmp_eq_u32 s{S_L}, 1\ns_cbranch_scc1 FINAL")
    x_store(k, WS["ST"][0] + 2 * STS, 2 * STS)
    wq.flush()
    pstamp(k, 18)
    for ml in range(4):
        k.e(f"s_add_u32 s{36+ml}, s{36+ml}, 0x{XS:x}")
    for q in range(16):
        k.e(f"s_add_u32 s{S_HB+q}, s{S_HB+q}, 0x{HS:x}")
    k.wait_vm("st")
    pstamp(k, 24)
    k.e("s_barrier")
    flag(k, S_FLW, S_EP)
    dma_w123(k, LDS_B, [(S_CG, 163840)], WS["WQ"][0] + LDS_B, 60, 20)
    k.e(f"s_add_u32 s{S_L}, s{S_L}, 1")
    x_setup(k, WS["X"][0])
    poll(k, S_FLR, S_EP)
    k.e(f"s_add_u32 s{S_E1}, s{S_E1}, 1")
    pstamp(k, 19)

def final_store(k):
    P = RES
    k.e("v_mul_u32_u24 v10, 1280, v4\nv_lshl_add_u32 v10, v3, 3, v10")
    lin(k, 46, 0, [(S_MT, 20480), (S_CG8, 160)])
    k.e(f"s_and_b32 s47, s{S_CG8}, 1")
    for t in range(5):
        k.e(f"s_cmp_eq_u32 s47, 1")
        k.sel(50, 32 * ((t + 1) % 5), 32 * t)
        k.e("s_add_u32 s50, s50, s46")
        k.vm(f"buffer_store_dwordx2 v[{P+2*t}:{P+2*t+1}], v10, s[{SRDO}:{SRDO+3}], s50 offen", "st")

def build_main():
    k = K(NAME)
    k.e("s_cmp_ge_u32 s2, 256")
    k.e("s_cbranch_scc1 MAIN_END")
    k.ldarg(10, "ws")
    k.ldarg(36, "out")
    k.e("s_and_b32 s24, s2, 7\ns_lshr_b32 s25, s2, 3")
    k.e("s_lshr_b32 s26, s24, 1\ns_and_b32 s24, s24, 1")
    k.e(f"s_lshl_b32 s{S_RB}, s26, 2\ns_lshr_b32 s27, s25, 3\ns_add_u32 s{S_RB}, s{S_RB}, s27")
    k.e(f"s_lshl_b32 s{S_CG}, s24, 3\ns_and_b32 s27, s25, 7\ns_add_u32 s{S_CG}, s{S_CG}, s27")
    k.e(f"s_lshl_b32 s{S_RB64}, s26, 3\ns_lshr_b32 s27, s25, 2\ns_add_u32 s{S_RB64}, s{S_RB64}, s27")
    k.e(f"s_lshl_b32 s{S_CG8}, s24, 2\ns_and_b32 s27, s25, 3\ns_add_u32 s{S_CG8}, s{S_CG8}, s27")
    k.e("v_lshrrev_b32 v1, 6, v0")
    k.e("v_and_b32 v2, 63, v0")
    k.e(f"v_readfirstlane_b32 s{S_W}, v1")
    k.e("v_lshrrev_b32 v3, 4, v2")
    k.e("v_and_b32 v4, 15, v2")
    k.e("v_lshlrev_b32 v5, 4, v2")
    k.e("v_lshlrev_b32 v6, 3, v2")
    k.e("v_add_u32 v7, 0x10000, v5\nv_add_u32 v8, 0x20000, v5\nv_add_u32 v9, 4096, v5")
    k.e("v_lshlrev_b32 v29, 2, v4")
    k.e("v_lshlrev_b32 v1, 7, v2")
    k.e(f"v_mov_b32 v28, 0x{OOB:x}\nv_cmp_eq_u32 vcc, 0, v2\nv_cndmask_b32 v28, v28, v2, vcc")
    if PROF:
        k.e("v_mov_b32 v31, 0")
    k.e(f"s_lshl_b32 s{S_MT0}, s{S_RB}, 3\ns_lshl_b32 s27, s{S_W}, 1\ns_add_u32 s{S_MT0}, s{S_MT0}, s27")
    k.e(f"s_lshl_b32 s{S_MT}, s{S_RB64}, 2\ns_add_u32 s{S_MT}, s{S_MT}, s{S_W}")
    k.e(f"s_mov_b32 s{S_L}, 0\ns_mov_b32 s{S_E1}, 1\ns_mov_b32 s{S_EP}, 0")
    k.e(f"s_mul_i32 s{S_W7}, s{S_W}, 7168")
    lin(k, S_WGU, WS["WGU"][0], [(S_CG, 280 * 1024), (S_W7, 1)])
    k.e("s_waitcnt lgkmcnt(0)")
    k.srd(SRD, 10, WS_END)
    k.srd(SRDO, 36, S * D * 2)
    k.srd(SRDQ, 10, WS_END)
    pstamp(k, 0)
    for f in wq_dma(k, 0, SRD):
        f()
    lin(k, S_FCR, FC_OFF, [(S_CG, FST)])
    lin(k, S_FCW, 0, [(S_FCR, 1), (S_RB, 4)])
    lin(k, S_FLR, FL_OFF, [(S_RB, FST)])
    lin(k, S_FLW, 0, [(S_FLR, 1), (S_CG, 4)])
    lin(k, S_WD, WS["WD"][0], [(S_CG8, 56 * 5120), (S_W, 70 * 1024)])
    lin(k, S_WO, WS["WO"][0], [(S_CG8, 102400), (S_W, 25600)])
    xio_setup(k)
    xio(k, WS["X"][0])
    k.vm(f"buffer_load_dwordx4 v[{RES}:{RES+3}], v5, {R_}, s44 offen", "res")
    k.vm(f"buffer_load_dwordx4 v[{RES+4}:{RES+7}], v5, {R_}, s44 offen offset:1024", "res")
    k.vm(f"buffer_load_dwordx2 v[{RES+8}:{RES+9}], v6, {R_}, s45 offen", "res")
    x_setup(k, WS["X"][0])
    o_setup(k)
    h_setup(k)
    red_setup(k)
    k.label("LOOP")
    k.vmq = []; k.dsq = []; k.ds_done = -1
    p1(k)
    p2(k)
    k.e(f"s_cmp_eq_u32 s{S_L}, 1\ns_cselect_b32 s{SRDQ+2}, 0, s{SRD+2}")
    p3(k)
    p4(k)
    if PROF:
        lin(k, 46, WS["PROF"][0], [(2, 4 * 512), (S_W, 512)])
        k.e("v_lshlrev_b32 v10, 2, v2")
        k.e(f"buffer_store_dword v31, v10, {R_}, s46 offen")
    k.e("s_branch LOOP")
    k.label("FINAL")
    final_store(k)
    pstamp(k, 18)
    if PROF:
        k.e("s_memrealtime s[98:99]\ns_waitcnt lgkmcnt(0)\nv_writelane_b32 v31, s98, 63")
        lin(k, 46, WS["PROF"][0], [(2, 4 * 512), (S_W, 512)])
        k.e("v_lshlrev_b32 v10, 2, v2")
        k.e(f"buffer_store_dword v31, v10, {R_}, s46 offen offset:256")
    k.e("s_waitcnt vmcnt(0)")
    k.label("MAIN_END")
    k.e("s_endpgm")
    return (k, 256, 256, 256, 163840, 256)
```
